```python
import torch

def _softmax(x, axis=-1):
    return torch.softmax(x, dim=axis)
def _gelu(x):
    return torch.nn.functional.gelu(x, approximate="tanh")
def _silu(x):
    return torch.nn.functional.silu(x)
def _sigmoid(x):
    return torch.sigmoid(x)
def _layernorm(x, axis=-1, eps=1e-5):
    m = x.mean(dim=axis, keepdim=True)
    v = x.var(dim=axis, keepdim=True, unbiased=False)
    return (x - m) / torch.sqrt(v + eps)
def _scatter_add(tgt, idx, src, axis=0):
    return tgt.clone().index_add_(axis, idx, src)
def _segment_sum(src, seg, n):
    out = torch.zeros((n,) + src.shape[1:], dtype=src.dtype)
    return out.index_add_(0, seg, src)
def _pad(x, pw):
    flat = tuple(v for pair in reversed(pw) for v in pair)
    return torch.nn.functional.pad(x, flat)

kernel_name = 'gated_mix__spectral_fnet__sliding_local_dilated__prompt'

def setup_inputs():

    _w = (lambda a: (lambda t: t.to(torch.bfloat16) if t.is_floating_point() else t)(torch.as_tensor(a)))
    def _A_setup():
        B, S, D = 1, 2048, 448
        ns = torch.arange(S)[:, None] * torch.arange(S)[None, :]
        nd = torch.arange(D)[:, None] * torch.arange(D)[None, :]
        Ws_re = torch.cos(-2.0 * torch.pi * ns / S).to(float)
        Ws_im = torch.sin(-2.0 * torch.pi * ns / S).to(float)
        Wd_re = torch.cos(-2.0 * torch.pi * nd / D).to(float)
        Wd_im = torch.sin(-2.0 * torch.pi * nd / D).to(float)
        return {
            "x": _w((lambda *s: torch.randn(*s, dtype=torch.bfloat16) * 0.05)(B, S, D)),
            "dft_seq_re": _w(Ws_re),
            "dft_seq_im": _w(Ws_im),
            "dft_hid_re": _w(Wd_re),
            "dft_hid_im": _w(Wd_im),
        }
    _A_in = _A_setup()

    def _B_setup():
        B, S, D = 1, 2048, 448
        return {
            "x": _w((lambda *s: torch.randn(*s, dtype=torch.bfloat16) * 0.05)(B, S, D)),
            "wqkv": _w((lambda *s: torch.randn(*s, dtype=torch.bfloat16) * 1.6)(D, 3 * D)),
            "wo": _w((lambda *s: torch.randn(*s, dtype=torch.bfloat16) * 0.2)(D, D)),
        }
    _B_in = _B_setup()

    return {
        "A_x": _A_in["x"],
        "A_dft_seq_re": _A_in["dft_seq_re"],
        "A_dft_seq_im": _A_in["dft_seq_im"],
        "A_dft_hid_re": _A_in["dft_hid_re"],
        "A_dft_hid_im": _A_in["dft_hid_im"],
        "B_x": _B_in["x"],
        "B_wqkv": _B_in["wqkv"],
        "B_wo": _B_in["wo"],
        "gate_w": _w((lambda *s: torch.randn(*s, dtype=torch.bfloat16) * 0.05)(448) * 16.0),
    }

def reference(A_x, A_dft_seq_re, A_dft_seq_im, A_dft_hid_re, A_dft_hid_im, B_x, B_wqkv, B_wo, gate_w):
    def _A_ref(x, dft_seq_re, dft_seq_im, dft_hid_re, dft_hid_im):
        a = torch.einsum("bsd,ed->bse", x, dft_hid_re)
        b = torch.einsum("bsd,ed->bse", x, dft_hid_im)
        y = torch.einsum("ts,bse->bte", dft_seq_re, a) - torch.einsum("ts,bse->bte", dft_seq_im, b)
        return y

    def _B_ref(x, wqkv, wo):
        B, S, D = x.shape
        H = 16; Dh = D // H
        W, dil = 8, 2
        qkv = (lambda x, *d: x.permute(*d))((x @ wqkv).reshape(B, S, 3, H, Dh), 2, 0, 3, 1, 4)
        q, k, v = qkv[0], qkv[1], qkv[2]
        scale = Dh ** -0.5
        pos = torch.arange(S)
        off = torch.arange(W) * dil
        idx = pos[:, None] - off[None, :]
        mask = idx >= 0
        idx_c = torch.where(mask, idx, 0).reshape(-1)
        kg = k[:, :, idx_c, :].reshape(B, H, S, W, Dh)
        vg = v[:, :, idx_c, :].reshape(B, H, S, W, Dh)
        logits = torch.einsum("bhsd,bhswd->bhsw", q, kg) * scale
        logits = torch.where(mask[None, None, :, :], logits, -1e9)
        attn = _softmax(logits, axis=-1)
        o = torch.einsum("bhsw,bhswd->bhsd", attn, vg)
        return (lambda x, *d: x.permute(*d))(o, 0, 2, 1, 3).reshape(B, S, D) @ wo

    x = A_x
    g = _sigmoid((x * gate_w).sum(-1, keepdims=True))
    a = _A_ref(x, A_dft_seq_re, A_dft_seq_im, A_dft_hid_re, A_dft_hid_im)
    b = _B_ref(x, B_wqkv, B_wo)
    return g * a + (1 - g) * b
```

```python
class Asm:
    def __init__(self):
        self.L = []; self.vm = []; self.lg = []
    def __call__(self, s):
        for l in s.strip("\n").split("\n"): self.L.append(l)
    def vmem(self, s, tag): self(s); self.vm.append(tag)
    def ds(self, s, tag): self(s); self.lg.append(tag)
    def _n(self, lst, tags):
        idx = [i for i, t in enumerate(lst) if t in tags]
        if not idx: return None
        return len(lst) - 1 - max(idx)
    def wait_vm(self, *tags):
        n = self._n(self.vm, tags)
        if n is None: return
        n = min(n, 63)
        self(f"s_waitcnt vmcnt({n})"); self.vm = self.vm[len(self.vm) - n:] if n else []
    def wait_lg(self, *tags):
        n = self._n(self.lg, tags)
        if n is None: return
        n = min(n, 15)
        self(f"s_waitcnt lgkmcnt({n})"); self.lg = self.lg[len(self.lg) - n:] if n else []
    def wait_lg0(self):
        if self.lg: self("s_waitcnt lgkmcnt(0)")
        self.lg = []
    def wait_vm0(self):
        self("s_waitcnt vmcnt(0)"); self.vm = []
    def text(self): return "\n".join(self.L) + "\n"
def vr(b, n=1): return f"v{b}" if n == 1 else f"v[{b}:{b+n-1}]"
def ar(b, n=1): return f"a{b}" if n == 1 else f"a[{b}:{b+n-1}]"
def sr(b, n=1): return f"s{b}" if n == 1 else f"s[{b}:{b+n-1}]"
def mfma(d, a, b, c=None):
    return f"v_mfma_f32_16x16x32_bf16 {vr(d,4)}, {vr(a,4)}, {vr(b,4)}, {vr(d,4) if c is None else c}"
def srd(A, s, ptr, nbytes):
    A(f"s_mov_b32 s{s}, s{ptr}\ns_mov_b32 s{s+1}, s{ptr+1}\ns_mov_b32 s{s+2}, {nbytes}\ns_mov_b32 s{s+3}, 0x20000")
def kernel_head(name):
    return f".p2align 8\n.globl {name}\n.type {name},@function\n{name}:\n"
def kernel_desc(name, vgpr, sgpr=96):
    acc = (vgpr + 3) // 4 * 4
    return f""".p2align 6
.amdhsa_kernel {name}
  .amdhsa_next_free_vgpr {vgpr}
  .amdhsa_next_free_sgpr {sgpr}
  .amdhsa_accum_offset {min(acc,256)}
  .amdhsa_group_segment_fixed_size 0
  .amdhsa_kernarg_size 96
  .amdhsa_user_sgpr_count 2
  .amdhsa_user_sgpr_kernarg_segment_ptr 1
  .amdhsa_system_sgpr_workgroup_id_x 1
.end_amdhsa_kernel
"""
```

```python
from asmlib import *
O_WS, Y_WS, G_WS, T_WS = 0, 2 << 20, 4 << 20, 5 << 20
WS_BYTES = 6 << 20
XB, WB, HB = 2048 * 896, 448 * 2688, 448 * 896

def load_ptrs(A):
    A("s_load_dwordx16 s[4:19], s[0:1], 0\ns_load_dwordx8 s[20:27], s[0:1], 64")

def stamp(A, opt, slot):
    if not opt.get("stamp"): return
    A(f"s_memrealtime s[{80+2*slot}:{81+2*slot}]")

def stamp_store(A, opt, base, nst):
    if not opt.get("stamp"): return
    A("s_waitcnt lgkmcnt(0)")
    A(f"s_lshl_b32 s3, s2, 2\ns_add_u32 s3, s3, s44\ns_lshl_b32 s3, s3, 5\ns_add_u32 s3, s3, {T_WS + base}")
    for i in range(nst):
        A(f"v_mov_b32 v1, s{80+2*i}\nv_mov_b32 v2, s3\nbuffer_store_dword v1, v2, s[40:43], 0 offen offset:{4*i}")

def interleave(A, main, fill, every=1, start=0):
    fill = list(fill); n = len(main)
    for i, m in enumerate(main):
        m()
        if i >= start:
            left = n - i
            k = -(-len(fill) // left) if every == 0 else every
            for _ in range(min(k, len(fill))): fill.pop(0)()
    for f in fill: f()

def band_masks():
    ma, mb, mb0 = [], [], []
    for r in range(4):
        a = b = b0 = 0
        for lane in range(64):
            l, kg = lane & 15, lane >> 4
            kp = 4 * kg + r
            if kp >= l + 9: a |= 1 << lane
            if 0 <= l - kp <= 7:
                b |= 1 << lane
                if kp >= 7: b0 |= 1 << lane
        ma.append(a); mb.append(b); mb0.append(b0)
    return ma, mb, mb0

def qkv_role(A, opt):
    st = opt.get("st", "")
    SL = 36864
    srd(A, 28, 4, XB); srd(A, 32, 16, WB)
    A("""
s_and_b32 s48, s47, 1
s_lshl_b32 s49, s46, 1
s_add_u32 s48, s48, s49
s_lshr_b32 s49, s47, 1
s_lshr_b32 s50, s44, 1
s_and_b32 s51, s44, 1
v_lshrrev_b32 v2, 3, v1
v_and_b32 v3, 7, v1
v_lshrrev_b32 v4, 1, v2
v_lshlrev_b32 v5, 1, v4
v_xor_b32 v5, v3, v5
v_lshrrev_b32 v6, 2, v2
v_and_b32 v7, 3, v2
v_lshl_add_u32 v6, v6, 3, v7
s_lshl_b32 s52, s50, 5
s_lshl_b32 s53, s51, 2
s_add_u32 s52, s52, s53
v_add_u32 v6, s52, v6
s_movk_i32 s53, 2688
s_mul_i32 s54, s48, 112
v_mul_u32_u24 v6, s53, v6
v_lshl_add_u32 v6, v5, 4, v6
v_add_u32 v6, s54, v6
v_cmp_eq_u32 vcc, 7, v5
v_bfrev_b32 v7, 1
s_mul_i32 s55, s50, 12288
v_cndmask_b32 v32, v6, v7, vcc
s_lshl_b32 s56, s51, 11
s_add_u32 s55, s55, s56
s_mul_i32 s56, s44, 3072
s_add_u32 s56, s56, 24576
s_mul_i32 s57, s49, 86
s_mul_i32 s58, s44, 24
s_add_u32 s57, s57, s58
s_sub_u32 s57, s57, 7
s_lshl_b32 s57, s57, 1
s_add_u32 s57, s57, s45
s_mul_i32 s57, s57, 896
s_movk_i32 s58, 1792
v_mul_u32_u24 v8, s58, v2
v_add_u32 v8, s57, v8
v_xor_b32 v9, v3, v4
s_lshl_b32 s59, s51, 2
v_xor_b32 v9, s59, v9
v_xor_b32 v10, 4, v9
v_lshl_add_u32 v33, v9, 4, v8
v_lshl_add_u32 v34, v10, 4, v8
v_add_u32 v34, 14336, v34
v_add_u32 v35, 28672, v33""")
    def dma(c):
        slot = c % 4; out = []
        for kp in range(2):
            for sec in range(3):
                def f(kp=kp, sec=sec):
                    A(f"s_add_u32 m0, s55, {slot*SL + sec*4096 + kp*1024 - sec*896}\ns_mov_b32 s60, {c*172032 + kp*43008}")
                    A.vmem(f"buffer_load_dwordx4 v32, s[32:35], s60 offen offset:{sec*896} lds", ("d", c))
                out.append(f)
        for i in range(3):
            def f(i=i):
                A(f"s_add_u32 m0, s56, {slot*SL + i*1024 - c*128}\ns_nop 0")
                A.vmem(f"buffer_load_dwordx4 v{33+i}, s[28:31], 0 offen offset:{c*128} lds", ("d", c))
            out.append(f)
        return out
    for c in range(4):
        for f in dma(c): f()
    A(f"""
v_lshrrev_b32 v2, 4, v1
v_bfe_u32 v3, v1, 2, 2
v_and_b32 v4, 3, v1
v_and_b32 v5, 1, v2
v_lshl_add_u32 v5, v5, 2, v3
v_lshrrev_b32 v6, 1, v2
v_lshlrev_b32 v6, 10, v6
v_lshl_add_u32 v6, v5, 7, v6
v_and_b32 v7, 6, v5
s_mul_i32 s61, s51, 56
v_lshl_add_u32 v8, v4, 3, s61
v_add_u32 v9, 32, v8
v_lshrrev_b32 v10, 4, v8
v_xor_b32 v10, v10, v7
v_and_b32 v8, 8, v8
v_lshl_add_u32 v10, v10, 4, v8
v_add_u32 v16, v6, v10
v_lshrrev_b32 v10, 4, v9
v_xor_b32 v10, v10, v7
v_lshl_add_u32 v10, v10, 4, v8
v_add_u32 v17, v6, v10
v_and_b32 v3, 15, v1
v_lshrrev_b32 v4, 1, v3
v_xor_b32 v4, v4, v2
s_mul_i32 s61, s50, 6144
s_add_u32 s61, s61, 24576
v_lshlrev_b32 v5, 7, v3
v_add_u32 v5, s61, v5
v_lshl_add_u32 v18, v4, 4, v5
v_xor_b32 v19, 64, v18""")
    for s in range(1, 4):
        for i in range(4): A(f"v_add_u32 v{16+4*s+i}, {s*SL}, v{16+i}")
    A(f"""
s_mul_i32 s61, s50, 48
v_add_u32 v4, s61, v3
s_mul_i32 s62, s49, 86
s_sub_u32 s62, s62, 7
v_add_u32 v5, s62, v4
v_and_b32 v6, 15, v5
v_lshl_add_u32 v6, v6, 1, s45
s_lshl_b32 s63, s48, 1
s_add_u32 s63, s63, s51
v_lshl_add_u32 v6, v6, 4, s63
v_lshl_add_u32 v6, v6, 2, v2
v_lshlrev_b32 v6, 10, v6
v_ashrrev_i32 v7, 4, v5
v_lshl_add_u32 v6, v7, 4, v6
v_bfrev_b32 v7, 1
s_sub_u32 s63, 1031, s62
s_sub_u32 s63, s63, 14
s_min_u32 s63, s63, 86""")
    for T in range(3):
        A(f"v_add_u32 v8, {16*T-7}, v4\nv_cmp_gt_u32 vcc, s63, v8\nv_add_u32 v9, {16*T}, v6\ns_nop 0\nv_cndmask_b32 v{11+T}, v7, v9, vcc")
    ma, mb, mb0 = band_masks()
    A("s_or_b32 s61, s49, s50\ns_cmp_eq_u32 s61, 0")
    for r in range(4):
        for hi in range(2):
            x, y = (mb0[r] >> (32*hi)) & 0xffffffff, (mb[r] >> (32*hi)) & 0xffffffff
            A(f"s_mov_b32 s{72+2*r+hi}, {y:#x}")
            if x != y: A(f"s_cselect_b32 s{72+2*r+hi}, {x:#x}, s{72+2*r+hi}")
    FS = [36, 72]
    def reads(n):
        c, ksl = divmod(n, 2); b = 16 + 4 * (c % 4); f = FS[n & 1]; out = []
        for t in range(3):
            out.append(lambda t=t: A.ds(f"ds_read_b128 {vr(f+4*t,4)}, v{b+2+ksl} offset:{t*2048}", ("x", n)))
        for sec in range(3):
            for ft in range(2):
                for j in range(2):
                    out.append(lambda sec=sec, ft=ft, j=j: A.ds(
                        f"ds_read_b64_tr_b16 {vr(f+12+(sec*2+ft)*4+2*j,2)}, v{b+ft} offset:{((ksl*3+sec)*2+j)*2048}", ("w", n, sec, ft)))
        return out
    def mf(n):
        f = FS[n & 1]; out = []
        for sec in range(3):
            for ft in range(2):
                for t in range(3):
                    def g(sec=sec, ft=ft, t=t):
                        if t == 0: A.wait_lg(("x", n), ("w", n, sec, ft))
                        d = 108 + sec*24 + (t*2+ft)*4; wv = f+12+(sec*2+ft)*4; xv = f+4*t
                        A(mfma(d, wv, xv, "0" if n == 0 else None) if sec < 2 else mfma(d, xv, wv, "0" if n == 0 else None))
                    out.append(g)
        return out
    A.wait_vm(("d", 0)); A("s_barrier")
    stamp(A, opt, 1)
    for f in reads(0): f()
    for n in range(14):
        m = mf(n)
        if n == 13:
            for g in m: g()
        elif n & 1:
            c = n // 2
            for g in m[:6]: g()
            A.wait_lg0(); A.wait_vm(("d", c+1)); A("s_barrier")
            fill = reads(n+1)
            if c + 4 < 7:
                d = dma(c+4); fill = fill[:15] + d
            interleave(A, m[6:], fill, every=2)
        else:
            interleave(A, m, reads(n+1), every=1)
    stamp(A, opt, 2)
    Q = lambda t: 36 + 4*t
    K = lambda T: 48 + 4*(T+1)
    V = lambda ft, T: 64 + 8*ft + 2*(T+1)
    S = lambda T: 84 + 8*T
    acc = lambda sec, t, ft: 108 + sec*24 + (t*2+ft)*4
    def pk(d, s): A(f"v_cvt_pk_bf16_f32 v{d}, v{s}, v{s+1}\nv_cvt_pk_bf16_f32 v{d+1}, v{s+2}, v{s+3}")
    for r in range(4):
        for hi in range(2):
            A(f"s_mov_b32 s{56+2*r+hi}, {(ma[r] >> (32*hi)) & 0xffffffff:#x}\ns_mov_b32 s{64+2*r+hi}, {(mb[r] >> (32*hi)) & 0xffffffff:#x}")
    for ft in range(2): pk(K(2)+2*ft, acc(1, 2, ft))
    A("v_lshlrev_b32 v2, 4, v1\ns_lshl_b32 s52, s44, 11\ns_add_u32 s52, s52, 147456\nv_add_u32 v3, s52, v2\ns_lshl_b32 s52, s51, 11\ns_add_u32 s52, s52, 147456\nv_add_u32 v4, s52, v2")
    for ft in range(2): pk(V(ft, 2), acc(2, 2, ft))
    A.ds(f"ds_write_b128 v3, {vr(K(2),4)}", "hw")
    A.ds(f"ds_write_b64 v3, {vr(V(0,2),2)} offset:1024", "hw")
    A.ds(f"ds_write_b64 v3, {vr(V(1,2),2)} offset:1032", "hw")
    for t in range(3):
        for ft in range(2): pk(Q(t)+2*ft, acc(0, t, ft))
    for t in range(2):
        for ft in range(2): pk(K(t)+2*ft, acc(1, t, ft)); pk(V(ft, t), acc(2, t, ft))
    A("s_mov_b32 exec_lo, 0\ns_mov_b32 exec_hi, 0xffff0000")
    for t in range(3): A(f"v_mov_b32 v{Q(t)+2}, 0\nv_mov_b32 v{Q(t)+3}, 0")
    A("s_mov_b64 exec, -1")
    for i in range(4): A(f"v_mov_b32 v{80+i}, 0x3f803f80")
    A("v_mov_b32 v10, 0xf149f2ca")
    A.wait_lg0(); A("s_barrier")
    A.ds(f"ds_read_b128 {vr(K(-1),4)}, v4", "hk")
    A.ds(f"ds_read_b64 {vr(V(0,-1),2)}, v4 offset:1024", "hv")
    A.ds(f"ds_read_b64 {vr(V(1,-1),2)}, v4 offset:1032", "hv")
    for T in (2, 1):
        A(mfma(S(T), K(T-1), Q(T), "0")); A(mfma(S(T)+4, K(T), Q(T), "0"))
    A(mfma(S(0)+4, K(0), Q(0), "0"))
    A.wait_lg("hk"); A(mfma(S(0), K(-1), Q(0), "0"))
    A("s_mov_b32 s52, 0x3e8b97f6\ns_nop 2")
    U = (2, 1, 0)
    for T in U:
        if T == 0: A("s_nop 0")
        for i in range(8):
            mk = 56 + 2*i if i < 4 else ((72 if T == 0 else 64) + 2*(i-4))
            A(f"v_cndmask_b32 v{S(T)+i}, v10, v{S(T)+i}, s[{mk}:{mk+1}]")
    M = lambda T: 156 + T
    TT = lambda T: 160 + T
    for T in U: A(f"v_max3_f32 v{M(T)}, v{S(T)}, v{S(T)+1}, v{S(T)+2}")
    for T in U: A(f"v_max3_f32 v{M(T)}, v{M(T)}, v{S(T)+3}, v{S(T)+4}")
    for T in U: A(f"v_max3_f32 v{M(T)}, v{M(T)}, v{S(T)+5}, v{S(T)+6}")
    for T in U: A(f"v_max_f32 v{M(T)}, v{M(T)}, v{S(T)+7}")
    for sw in (16, 32):
        for T in U: A(f"v_mov_b32 v{TT(T)}, v{M(T)}")
        for T in U: A(f"v_permlane{sw}_swap_b32 v{M(T)}, v{TT(T)}")
        for T in U: A(f"v_max_f32 v{M(T)}, v{M(T)}, v{TT(T)}")
    for T in U: A(f"v_mul_f32 v{M(T)}, s52, v{M(T)}")
    P = lambda T: 108 + 4*T
    O = lambda T: 120 + 12*T
    A.wait_lg0()
    for T in U:
        for i in range(8): A(f"v_fma_f32 v{S(T)+i}, v{S(T)+i}, s52, -v{M(T)}")
        for i in range(8): A(f"v_exp_f32 v{S(T)+i}, v{S(T)+i}")
        for i in range(4): A(f"v_cvt_pk_bf16_f32 v{P(T)+i}, v{S(T)+2*i}, v{S(T)+2*i+1}")
        A("s_nop 1")
        A(mfma(O(T)+8, 80, P(T), "0")); A(mfma(O(T), V(0, T-1), P(T), "0")); A(mfma(O(T)+4, V(1, T-1), P(T), "0"))
    A("s_mov_b32 s52, -1\ns_mov_b32 s53, 0xffff")
    for T in U:
        if T == 0: A("s_nop 1")
        A(f"v_rcp_f32 v{O(T)+8}, v{O(T)+8}\ns_nop 0")
        for i in range(8): A(f"v_mul_f32 v{O(T)+i}, v{O(T)+i}, v{O(T)+8}")
        d = 164 + 4*T
        for i in range(4): A(f"v_cvt_pk_bf16_f32 v{d+i}, v{O(T)+2*i}, v{O(T)+2*i+1}")
        A(f"v_cndmask_b32 v{d+2}, 0, v{d+2}, s[52:53]\nv_cndmask_b32 v{d+3}, 0, v{d+3}, s[52:53]")
        A.vmem(f"buffer_store_dwordx4 {vr(d,4)}, v{11+T}, s[40:43], 0 offen {st}", "st")

def dft_role(A, opt):
    st = opt.get("st", "")
    SL = 32768
    srd(A, 28, 4, XB); srd(A, 32, 10, HB); srd(A, 36, 12, HB)
    A(f"""
s_sub_u32 s48, s47, 24
s_lshl_b32 s49, s48, 3
s_add_u32 s49, s49, s45
s_lshl_b32 s50, s46, 2
s_add_u32 s50, s50, s44
s_lshl_b32 s51, s50, 4
s_cmp_eq_u32 s50, 15
s_cselect_b32 s32, s20, s32
s_cselect_b32 s33, s21, s33
s_cselect_b32 s34, 896, s34
s_cselect_b32 s52, 0, s51
v_lshrrev_b32 v2, 3, v1
v_and_b32 v3, 7, v1
v_lshrrev_b32 v4, 1, v2
v_xor_b32 v4, v3, v4
v_lshlrev_b32 v4, 4, v4
s_lshl_b32 s53, s44, 1
s_add_u32 s53, s53, s49
s_mul_i32 s53, s53, 896
s_mov_b32 s54, 57344
v_mad_u32_u24 v5, v2, s54, v4
v_add_u32 v32, s53, v5
v_xor_b32 v33, 64, v32
v_add_u32 v33, {8*57344}, v33
s_movk_i32 s54, 896
v_mad_u32_u24 v5, v2, s54, v4
s_mul_i32 s55, s52, 896
v_add_u32 v34, s55, v5
v_xor_b32 v35, 64, v34
v_add_u32 v35, 7168, v35
s_lshl_b32 s56, s44, 12
s_add_u32 s56, s56, 1024
s_lshl_b32 s57, s44, 11
s_add_u32 s57, s57, 17408
s_mov_b32 s58, 917504""")
    def dma(c):
        slot = c % 4; out = []
        for cs in range(2):
            for hf in range(2):
                def f(cs=cs, hf=hf):
                    A(f"s_add_u32 m0, s57, {slot*SL + cs*8192 + hf*1024 - c*128}\ns_nop 0")
                    A.vmem(f"buffer_load_dwordx4 v{34+hf}, s[{32+4*cs}:{35+4*cs}], 0 offen offset:{c*128} lds", ("d", c))
                out.append(f)
        for ts in range(2):
            for hf in range(2):
                def f(ts=ts, hf=hf):
                    off = slot*SL + ts*2048 + hf*1024 - c*128
                    A(f"s_add_u32 m0, s56, {off}\ns_nop 0")
                    A.vmem(f"buffer_load_dwordx4 v{32+hf}, s[28:31], {'s58' if ts else '0'} offen offset:{c*128} lds", ("d", c))
                out.append(f)
        return out
    for c in range(4):
        for f in dma(c): f()
    A("""
v_lshrrev_b32 v2, 4, v1
v_and_b32 v3, 15, v1
v_lshrrev_b32 v4, 1, v3
v_xor_b32 v4, v4, v2
v_lshlrev_b32 v5, 7, v3
v_lshl_add_u32 v16, v4, 4, v5
v_xor_b32 v17, 64, v16
v_add_u32 v18, s57, v16
v_add_u32 v19, s57, v17
v_add_u32 v16, 1024, v16
v_add_u32 v17, 1024, v17""")
    for s in range(1, 4):
        for i in range(4): A(f"v_add_u32 v{16+4*s+i}, {s*SL}, v{16+i}")
    A("v_cvt_f32_u32 v4, v3\nv_mul_f32 v4, 0x3d000000, v4\nv_add_f32 v5, 0.5, v4\nv_lshlrev_b32 v6, 2, v2\nv_cvt_f32_u32 v6, v6")
    import struct
    fl = lambda x: hex(struct.unpack("<I", struct.pack("<f", x))[0])
    for i in range(8): A(f"v_add_f32 v{36+i}, {fl(16*(i>>2) + (i&3))}, v6")
    for kt in range(2):
        for i in range(8): A(f"v_mul_f32 v{44+i}, v{4+kt}, v{36+i}")
        for i in range(8): A(f"v_fract_f32 v{44+i}, v{44+i}")
        for i in range(8): A(f"v_cos_f32 v{52+i}, v{44+i}")
        for i in range(8): A(f"v_sin_f32 v{60+i}, v{44+i}")
        for i in range(4): A(f"v_cvt_pk_bf16_f32 v{180+4*kt+i}, v{52+2*i}, v{53+2*i}")
        for i in range(4): A(f"v_cvt_pk_bf16_f32 v{188+4*kt+i}, v{60+2*i}, v{61+2*i}")
        for i in range(4): A(f"v_xor_b32 v{196+4*kt+i}, 0x80008000, v{188+4*kt+i}")
    A(f"""
s_lshl_b32 s59, s48, 1
s_add_u32 s59, s59, s45
s_lshl_b32 s59, s59, 12
s_lshl_b32 s60, s51, 4
s_add_u32 s59, s59, s60
s_add_u32 s59, s59, {Y_WS}
v_lshlrev_b32 v11, 18, v2
v_lshl_add_u32 v11, v3, 4, v11
v_add_u32 v11, s59, v11
s_lshl_b32 s59, s49, 7
s_add_u32 s59, s59, {G_WS}
v_lshl_add_u32 v12, v2, 4, s59
v_cmp_eq_u32 vcc, 0, v3
v_bfrev_b32 v7, 1
s_nop 0
v_cndmask_b32 v12, v7, v12, vcc""")
    FS = [36, 76]
    def reads(n):
        c, ksl = divmod(n, 2); b = 16 + 4 * (c % 4); f = FS[n & 1]; out = []
        for cs in range(2):
            out.append(lambda cs=cs: A.ds(f"ds_read_b128 {vr(f+32+4*cs,4)}, v{b+2+ksl} offset:{cs*8192}", ("w", n)))
        for rt in range(8):
            out.append(lambda rt=rt: A.ds(f"ds_read_b128 {vr(f+4*rt,4)}, v{b+ksl} offset:{rt*2048}", ("x", n, rt)))
        return out
    def mf(n):
        f = FS[n & 1]; out = []
        for rt in range(8):
            for cs in range(2):
                def g(rt=rt, cs=cs):
                    if cs == 0: A.wait_lg(("w", n), ("x", n, rt))
                    A(mfma(116 + 32*cs + 4*rt, f+4*rt, f+32+4*cs, "0" if n == 0 else None))
                out.append(g)
        return out
    A.wait_vm(("d", 0)); A("s_barrier")
    stamp(A, opt, 1)
    for f in reads(0): f()
    for n in range(14):
        m = mf(n)
        if n == 13:
            for g in m: g()
        elif n & 1:
            c = n // 2
            for g in m[:6]: g()
            A.wait_lg0(); A.wait_vm(("d", c+1)); A("s_barrier")
            fill = reads(n+1)
            if c + 4 < 7: fill = fill + dma(c+4)
            interleave(A, m[6:], fill, every=2)
        else:
            interleave(A, m, reads(n+1), every=1)
    stamp(A, opt, 2)
    A("s_cmp_eq_u32 s50, 15\ns_cbranch_scc1 L_gate\ns_nop 5")
    for u in range(4):
        for cs in range(2):
            for ts in range(2):
                s = 116 + 32*cs + 4*(2*u+ts); d = 36 + 16*cs + 4*u + 2*ts
                A(f"v_cvt_pk_bf16_f32 v{d}, v{s}, v{s+1}\nv_cvt_pk_bf16_f32 v{d+1}, v{s+2}, v{s+3}")
    A("s_nop 1")
    YR = lambda u, kt: 116 + (u*2+kt)*4
    for kt in range(2):
        for u in range(4):
            A(mfma(YR(u, kt), 180+4*kt, 36+4*u, "0")); A(mfma(YR(u, kt)+32, 196+4*kt, 36+4*u, "0"))
        for u in range(4):
            A(mfma(YR(u, kt), 188+4*kt, 52+4*u)); A(mfma(YR(u, kt)+32, 180+4*kt, 52+4*u))
    for kt in range(2):
        if kt == 1: A("s_nop 0")
        for r in range(4):
            d = 68 + 4*(kt*4+r)
            for ri in range(2):
                for up in range(2):
                    A(f"v_cvt_pk_bf16_f32 v{d+2*ri+up}, v{YR(2*up,kt)+32*ri+r}, v{YR(2*up+1,kt)+32*ri+r}")
            A(f"s_mov_b32 s60, {(16*kt+r)*65536}")
            A.vmem(f"buffer_store_dwordx4 {vr(d,4)}, v11, s[40:43], s60 offen {st}", "st")
    A("s_branch L_k1_fin\nL_gate:\ns_nop 7")
    for rt in range(8):
        A(f"buffer_store_dwordx4 {vr(116+4*rt,4)}, v12, s[40:43], 0 offen offset:{(rt>>1)*256 + (rt&1)*64} {st}")

def k1_body(opt):
    A = Asm()
    A("s_cmp_ge_u32 s2, 256\ns_cbranch_scc1 L_k1_end")
    stamp(A, opt, 0)
    load_ptrs(A)
    A("v_lshrrev_b32 v2, 6, v0\nv_and_b32 v1, 63, v0\ns_and_b32 s45, s2, 1\nv_readfirstlane_b32 s44, v2\ns_bfe_u32 s46, s2, 0x20001\ns_lshr_b32 s47, s2, 3\ns_waitcnt lgkmcnt(0)")
    srd(A, 40, 26, WS_BYTES)
    A("s_cmp_ge_u32 s47, 24\ns_cbranch_scc1 L_dft")
    qkv_role(A, opt)
    A("s_branch L_k1_fin\nL_dft:")
    A.vm = []; A.lg = []
    dft_role(A, opt)
    A("L_k1_fin:")
    return A
```

```python
from asmlib import *
from gen_k1 import *
import struct
fl = lambda x: hex(struct.unpack("<I", struct.pack("<f", x))[0])

def k2_setup(A, opt):
    srd(A, 28, 18, HB); srd(A, 32, 22, XB)
    A(f"""
s_and_b32 s45, s2, 7
s_lshr_b32 s46, s2, 3
s_mul_i32 s47, s46, 37
s_lshr_b32 s47, s47, 8
s_mul_i32 s48, s47, 7
s_sub_u32 s48, s46, s48
s_lshr_b32 s49, s47, 1
s_lshl_b32 s45, s45, 1
s_add_u32 s45, s45, s49
s_sub_u32 s49, 32, s45
s_cmp_eq_u32 s45, 0
s_cselect_b32 s49, 16, s49
s_bitcmp1_b32 s47, 0
s_cselect_b32 s45, s49, s45
s_sub_u32 s49, 32, s45
s_and_b32 s49, s49, 31
s_lshl_b32 s50, s48, 2
s_add_u32 s50, s50, s44
s_lshl_b32 s50, s50, 4
v_and_b32 v3, 15, v1
v_lshrrev_b32 v2, 4, v1
v_add_u32 v4, s50, v3
v_sub_u32 v5, 448, v4
s_cmp_ge_u32 s50, 224
s_cselect_b32 s51, s49, s45
s_cselect_b64 vcc, -1, 0
s_lshl_b32 s51, s51, 16
s_add_u32 s51, s51, {Y_WS}
v_cndmask_b32 v4, v4, v5, vcc
v_lshlrev_b32 v4, 4, v4
v_lshl_add_u32 v4, v2, 12, v4
v_add_u32 v16, s51, v4
s_lshl_b32 s52, s44, 4
v_add_u32 v4, s52, v3
v_lshlrev_b32 v5, 10, v2
v_lshl_add_u32 v5, v4, 4, v5
s_lshl_b32 s53, s45, 16
v_add_u32 v17, s53, v5
v_and_b32 v5, 1, v4
v_lshl_add_u32 v5, v5, 5, s45
v_lshlrev_b32 v5, 5, v5
v_lshrrev_b32 v6, 1, v4
v_add_u32 v5, v5, v6
v_lshlrev_b32 v5, 2, v5
v_add_u32 v18, {G_WS}, v5
v_lshl_add_u32 v20, v4, 5, s45
s_movk_i32 s53, 896
v_mul_u32_u24 v5, s53, v20
v_lshl_add_u32 v5, v2, 3, v5
s_lshl_b32 s54, s48, 7
v_add_u32 v19, s54, v5
v_lshrrev_b32 v4, 3, v1
v_bfe_u32 v5, v1, 1, 2
v_lshrrev_b32 v6, 1, v4
v_xor_b32 v5, v5, v6
v_and_b32 v6, 1, v1
v_lshlrev_b32 v6, 4, v6
v_lshl_add_u32 v5, v5, 5, v6
v_mad_u32_u24 v5, v4, s53, v5
s_mul_i32 s55, s44, 7168
s_add_u32 s55, s55, s54
v_add_u32 v21, s55, v5
s_lshl_b32 s56, s44, 10
s_lshl_b32 s57, s44, 12
s_add_u32 s57, s57, 61440
v_bfe_u32 v4, v1, 2, 4
v_bfe_u32 v5, v1, 3, 2
v_and_b32 v6, 3, v1
v_lshlrev_b32 v6, 3, v6
v_lshl_add_u32 v6, v4, 7, v6
v_lshl_add_u32 v22, v5, 5, v6
v_xor_b32 v23, 32, v22
v_xor_b32 v24, 64, v22
v_xor_b32 v25, 96, v22
v_lshlrev_b32 v26, 4, v1
v_add_u32 v26, 61440, v26""")

def k2_coefs(A):
    A(f"""v_cvt_f32_u32 v4, v20
v_mul_f32 v4, {fl(1/2048)}, v4
v_lshrrev_b32 v5, 1, v2
v_lshlrev_b32 v5, 3, v5
v_and_b32 v6, 1, v2
v_add_u32 v5, v5, v6
v_cvt_f32_u32 v5, v5
s_cmp_gt_u32 s48, 3
s_cselect_b32 s58, 0x80008000, 0
s_cmp_ge_u32 s48, 3
s_cselect_b32 s59, 0x80008000, 0""")
    for half in range(2):
        for i in range(8): A(f"v_add_f32 v{60+i}, {fl(32*half + 16*(i>>2) + 2*(i&3))}, v5")
        for i in range(8): A(f"v_mul_f32 v{60+i}, v4, v{60+i}")
        for i in range(8): A(f"v_fract_f32 v{60+i}, v{60+i}")
        for i in range(8): A(f"v_cos_f32 v{68+i}, v{60+i}")
        for i in range(8): A(f"v_sin_f32 v{76+i}, v{60+i}")
        for q in range(2):
            ks = 2*half + q
            for i in range(2): A(f"v_cvt_pk_bf16_f32 v{28+4*ks+i}, v{68+4*q+2*i}, v{69+4*q+2*i}")
            for i in range(2): A(f"v_cvt_pk_bf16_f32 v{30+4*ks+i}, v{76+4*q+2*i}, v{77+4*q+2*i}")
            for i in range(2): A(f"v_mov_b32 v{44+4*ks+i}, v{28+4*ks+i}")
            for i in range(2): A(f"v_xor_b32 v{46+4*ks+i}, s59, v{30+4*ks+i}")
            for i in range(2): A(f"v_xor_b32 v{30+4*ks+i}, s58, v{30+4*ks+i}")

QB = [range(0, 4), range(4, 8), range(8, 11), range(11, 15)]
OF = 124
def k2_wo(A, b):
    out = []
    for q in QB[b]:
        def f(q=q):
            A(f"s_add_u32 m0, s56, {q*4096}\ns_mov_b32 s60, {q*4*7168}")
            A.vmem("buffer_load_dwordx4 v21, s[28:31], s60 offen lds", ("wo", b))
        out.append(f)
    return out
def k2_o(A, b, ld):
    out = []
    for h in range(4*b, 4*b+4):
        def f(h=h):
            A(f"s_mov_b32 s60, {h*4096}")
            A.vmem(f"buffer_load_dwordx4 {vr(OF+4*h,4)}, v17, s[40:43], s60 offen {ld}", ("o", h))
        out.append(f)
    return out
def k2_y(A, ld):
    out = []
    for ks in range(4):
        def f(ks=ks):
            A(f"s_add_u32 m0, s57, {ks*1024}\ns_mov_b32 s60, {ks*16384}")
            A.vmem(f"buffer_load_dwordx4 v16, s[40:43], s60 offen {ld} lds", "y")
        out.append(f)
    return out
AY, AB = 92, 108
FR = [60, 76]
def k2_rd_wo(A, h):
    out = []
    for ct in range(4):
        for j in range(2):
            out.append(lambda ct=ct, j=j: A.ds(f"ds_read_b64_tr_b16 {vr(FR[h&1]+4*ct+2*j,2)}, v{22+(ct ^ (2*(h&1)))} offset:{(28*h+16*j)*128}", ("wf", h, ct)))
    return out
def k2_mf_wo(A, h):
    out = []
    for ct in range(4):
        def g(ct=ct):
            if ct == 0: A.wait_vm(("o", h))
            A.wait_lg(("wf", h, ct))
            A(mfma(AB+4*ct, FR[h&1]+4*ct, OF+4*h, "0" if h == 0 else None))
        out.append(g)
    return out
def k2_rd_y(A, ks):
    return [lambda ct=ct: A.ds(f"ds_read_b128 {vr(FR[ks&1]+4*ct,4)}, v26 offset:{(ct*4+ks)*1024}", ("yf", ks, ct)) for ct in range(4)]
def k2_mf_y(A, ks):
    out = []
    for ct in range(4):
        def g(ct=ct):
            A.wait_lg(("yf", ks, ct))
            A(mfma(AY+4*ct, FR[ks&1]+4*ct, (28 if ct < 2 else 44)+4*ks, "0" if ks == 0 else None))
        out.append(g)
    return out
def k2_final(A):
    A.wait_vm("g")
    A(f"v_mul_f32 v27, {fl(-1.4426950408889634)}, v27\nv_exp_f32 v27, v27\ns_nop 0\nv_add_f32 v27, 1.0, v27\nv_rcp_f32 v27, v27\ns_nop 3")
    for ct in range(4):
        for r in range(4): A(f"v_sub_f32 v{AY+4*ct+r}, v{AY+4*ct+r}, v{AB+4*ct+r}")
        for r in range(4): A(f"v_fma_f32 v{AY+4*ct+r}, v{AY+4*ct+r}, v27, v{AB+4*ct+r}")
        for i in range(2): A(f"v_cvt_pk_bf16_f32 v{60+2*ct+i}, v{AY+4*ct+2*i}, v{AY+4*ct+2*i+1}")
        A.vmem(f"buffer_store_dwordx2 {vr(60+2*ct,2)}, v19, s[32:35], 0 offen offset:{ct*32}", "st")

def k2_body(opt):
    A = Asm()
    A("s_cmp_ge_u32 s2, 224\ns_cbranch_scc1 L_k2_end")
    stamp(A, opt, 0)
    load_ptrs(A)
    A("v_lshrrev_b32 v2, 6, v0\nv_and_b32 v1, 63, v0\ns_nop 0\nv_readfirstlane_b32 s44, v2\ns_waitcnt lgkmcnt(0)")
    srd(A, 40, 26, WS_BYTES)
    k2_setup(A, opt)
    for f in k2_y(A, ""): f()
    for b in range(2):
        for f in k2_wo(A, b) + k2_o(A, b, ""): f()
    A.vmem("buffer_load_dword v27, v18, s[40:43], 0 offen", "g")
    k2_coefs(A)
    A.wait_vm("y"); A("s_barrier")
    stamp(A, opt, 1)
    for f in k2_rd_y(A, 0): f()
    late = k2_wo(A, 2) + k2_o(A, 2, "") + k2_wo(A, 3) + k2_o(A, 3, "")
    for ks in range(4):
        if ks == 3:
            A.wait_vm(("wo", 0)); A("s_barrier")
        nxt = k2_rd_y(A, ks+1) if ks < 3 else k2_rd_wo(A, 0)
        interleave(A, k2_mf_y(A, ks), nxt + [late.pop(0) for _ in range(2)], every=2)
    for h in range(16):
        if h % 4 == 3 and h < 15:
            A.wait_vm(("wo", h//4 + 1)); A("s_barrier")
        nxt = k2_rd_wo(A, h+1) if h < 15 else []
        ex = [late.pop(0) for _ in range(min(2, len(late)))]
        interleave(A, k2_mf_wo(A, h), nxt + ex, every=2)
    stamp(A, opt, 2)
    k2_final(A)
    return A
```

```python
import sys
from asmlib import *
from gen_k1 import *
from gen_k2 import *
NAME = "gated_mix__spectral_fnet__sliding_local_dilated__prompt"
def two_kernel(opt):
    hdr = "".join(l for l in open(f"cdna_kernels/{NAME}.s.ref") if l.startswith(";") and "@launch" not in l)
    s = hdr + "; @launch kernel=phase1_kernel grid=(256,1,1) block=(256,1,1) lds=155648\n; @launch kernel=phase2_kernel grid=(224,1,1) block=(256,1,1) lds=77824\n"
    s += '.amdgcn_target "amdgcn-amd-amdhsa--gfx950"\n.text\n'
    A = k1_body(opt); stamp(A, opt, 3); stamp_store(A, opt, 0, 4); A("L_k1_end:\ns_endpgm")
    s += kernel_head("phase1_kernel") + A.text()
    A = k2_body(opt); stamp(A, opt, 3); stamp_store(A, opt, 65536, 4); A("L_k2_end:\ns_endpgm")
    s += kernel_head("phase2_kernel") + A.text()
    s += '.section .rodata,"a"\n' + kernel_desc("phase1_kernel", 256) + kernel_desc("phase2_kernel", 256)
    return s
if __name__ == "__main__":
    out = sys.argv[1]; opt = dict(a.split("=") for a in sys.argv[2:])
    open(out, "w").write(two_kernel(opt))
```

```python
from asmlib import *
from gen_k1 import *
from gen_k2 import *
FL_WS = G_WS + 65536
FR_ST = 1280
WA = 110592
OB = 77824
def pre(A):
    A(f"""
s_mov_b32 s96, s18
s_mov_b32 s97, s19
s_cmp_lt_u32 s2, 32
s_cselect_b32 s98, 0, {HB}
s_mov_b32 s99, 0x20000
s_sub_u32 s88, s47, 4
s_mul_i32 s89, s88, 37
s_lshr_b32 s89, s89, 8
s_mul_i32 s89, s89, 7
s_sub_u32 s88, s88, s89
s_lshl_b32 s88, s88, 7
s_mul_i32 s89, s44, 7168
s_add_u32 s88, s88, s89
s_movk_i32 s89, 896
v_lshrrev_b32 v4, 3, v1
v_bfe_u32 v5, v1, 1, 2
v_lshrrev_b32 v6, 1, v4
v_xor_b32 v5, v5, v6
v_and_b32 v6, 1, v1
v_lshlrev_b32 v6, 4, v6
v_lshl_add_u32 v5, v5, 5, v6
v_mad_u32_u24 v5, v4, s89, v5
v_add_u32 v204, s88, v5
s_lshl_b32 s100, s44, 10
s_movk_i32 s3, {2 * FR_ST}
s_mul_i32 s88, s46, 24
s_add_u32 s88, s88, s47
s_mul_i32 s89, s45, {FR_ST // 8}
s_add_u32 s88, s88, s89
s_sub_u32 s89, s2, 96
s_cmp_ge_u32 s47, 24
s_cselect_b32 s88, s89, s88
s_cselect_b32 s95, {FR_ST}, s3
s_cselect_b32 s3, -1, 0xffff
s_lshl_b32 s94, s88, 3
s_add_u32 s94, s94, {FL_WS}""")
def fill(A, c):
    out = []
    if c not in (3, 4): return out
    for q in (range(8) if c == 3 else range(7, 15)):
        def f(q=q):
            A(f"s_add_u32 m0, s100, {WA + q*4096 if c == 3 else (q-7)*4096}\ns_mov_b32 s60, {q*4*7168}")
            A.vmem("buffer_load_dwordx4 v204, s[96:99], s60 offen lds", "wo")
        out.append(f)
    if c == 4: out.append(lambda: A.vmem("buffer_load_dword v205, off, s[24:27], 0 sc1", "nonce"))
    return out
def poll(A, lab, msk):
    A(f"""s_mov_b32 s74, 0x40000
{lab}:
s_sub_u32 s74, s74, 1
s_cbranch_scc1 {lab}_x
buffer_load_dwordx4 v[4:7], v8, s[40:43], 0 offen sc1
buffer_load_dwordx4 v[12:15], v8, s[40:43], 0 offen offset:16 sc1
s_waitcnt vmcnt(0)
v_cmp_ne_u32 s[62:63], s101, v4
v_cmp_ne_u32 s[64:65], s101, v6
v_cmp_ne_u32 s[66:67], s101, v12
v_cmp_ne_u32 s[68:69], s101, v14
s_or_b64 s[62:63], s[62:63], s[64:65]
s_or_b64 s[66:67], s[66:67], s[68:69]
s_or_b64 s[62:63], s[62:63], s[66:67]
s_and_b64 s[64:65], s[62:63], {msk}
s_cbranch_scc1 {lab}
{lab}_x:""")
def fused_body(opt):
    opt = dict(opt); opt.update(_pre=pre, _fill=fill, _fused=1); opt.setdefault("st", "sc1")
    ld = opt.get("ld", "sc1")
    A = Asm()
    A("s_cmp_ge_u32 s2, 256\ns_cbranch_scc1 L_end")
    stamp(A, opt, 0)
    load_ptrs(A)
    A("s_memrealtime s[92:93]")
    A("v_lshrrev_b32 v2, 6, v0\nv_and_b32 v1, 63, v0\ns_and_b32 s45, s2, 1\nv_readfirstlane_b32 s44, v2\ns_bfe_u32 s46, s2, 0x20001\ns_lshr_b32 s47, s2, 3\ns_waitcnt lgkmcnt(0)")
    srd(A, 40, 26, WS_BYTES)
    A("s_movk_i32 s26, 256\ns_mov_b32 s27, 0x20000")
    A("s_or_b32 s88, s2, s44\ns_cbranch_scc1 L_nopub\ns_or_b32 s92, s92, 1\nv_mov_b32 v3, s92\ns_mov_b64 exec, 1\nbuffer_store_dword v3, off, s[24:27], 0 sc1\ns_mov_b64 exec, -1\nL_nopub:")
    A("s_cmp_ge_u32 s47, 24\ns_cbranch_scc1 L_dft")
    qkv_role(A, opt)
    A("s_branch L_k1_fin\nL_dft:")
    A.vm = []; A.lg = []
    dft_role(A, opt)
    A("L_k1_fin:")
    A.vm = []; A.lg = []
    stamp(A, opt, 3)
    k2_setup(A, opt)
    A(f"""s_mul_i32 s61, s45, {FR_ST}
s_add_u32 s61, s61, {FL_WS}
v_lshl_add_u32 v8, v1, 5, s61
v_mov_b32 v10, s94
v_mad_u32_u24 v10, v1, s95, v10
v_lshrrev_b32 v4, 3, v1
v_and_b32 v5, 7, v1
v_lshrrev_b32 v6, 1, v4
v_xor_b32 v5, v5, v6
v_lshlrev_b32 v5, 4, v5
v_lshl_add_u32 v5, v4, 10, v5
s_lshl_b32 s61, s45, 16
s_lshl_b32 s62, s44, 14
s_add_u32 s61, s61, s62
v_add_u32 v17, s61, v5
v_xor_b32 v21, 64, v17
v_add_u32 v21, 8192, v21
s_add_u32 s56, s62, {OB}
v_lshrrev_b32 v4, 1, v3
v_xor_b32 v4, v4, v2
v_lshlrev_b32 v4, 4, v4
v_lshl_add_u32 v4, v3, 7, v4
v_add_u32 v9, s56, v4
v_xor_b32 v11, 64, v9
s_mov_b32 s70, 0xffffff
s_mov_b32 s71, 0
s_mov_b32 s72, 0xff000000
s_mov_b32 s73, 0xff
s_cmp_lt_u32 s2, 32
s_cbranch_scc1 L_nowo""")
    for i in range(4): A(f"v_add_u32 v{60+i}, {WA}, v{22+i}")
    for h in range(16):
        for ct in range(4):
            for j in range(2):
                x = ct ^ (2*(h&1))
                A(f"ds_read_b64_tr_b16 {ar(16*h+4*ct+2*j,2)}, v{60+x if h < 8 else 22+x} offset:{(28*h+16*j - (0 if h < 8 else 224))*128}")
    A("L_nowo:")
    A("""s_waitcnt vmcnt(0)
v_readfirstlane_b32 s101, v205
s_cmp_lg_u32 s101, 0
s_cbranch_scc1 L_have
s_mov_b32 s74, 0x40000
L_renonce:
s_sub_u32 s74, s74, 1
s_cbranch_scc1 L_have
buffer_load_dword v205, off, s[24:27], 0 sc1
s_waitcnt vmcnt(0)
v_readfirstlane_b32 s101, v205
s_cmp_eq_u32 s101, 0
s_cbranch_scc1 L_renonce
L_have:
s_waitcnt lgkmcnt(0)
s_barrier
s_cmp_lg_u32 s44, 1
s_cbranch_scc1 L_noflag
v_mov_b32 v4, s101
s_mov_b32 exec_hi, 0
s_mov_b32 exec_lo, s3
buffer_store_dword v4, v10, s[40:43], 0 offen sc1
s_mov_b64 exec, -1
L_noflag:""")
    stamp(A, opt, 4)
    A("s_cmp_lt_u32 s2, 32\ns_cbranch_scc1 L_fin\ns_or_b64 exec, s[70:71], s[72:73]")
    poll(A, "L_pa", "s[72:73]")
    A("s_mov_b64 exec, -1")
    for f in k2_y(A, ld): f()
    A.vmem(f"buffer_load_dword v27, v18, s[40:43], 0 offen {ld}", "g")
    def odma():
        for hp in range(8):
            for hf in range(2):
                A(f"s_add_u32 m0, s56, {hp*2048 + hf*1024 - hp*128}\ns_nop 0")
                A.vmem(f"buffer_load_dwordx4 v{17+4*hf}, s[40:43], 0 offen offset:{hp*128} {ld} lds", ("o", hp))
    A("s_and_b64 s[76:77], s[62:63], s[70:71]\ns_cbranch_scc1 L_c1")
    stamp(A, opt, 5)
    odma()
    A("L_c1:")
    k2_coefs(A)
    A("s_cmp_eq_u64 s[76:77], 0\ns_cbranch_scc1 L_e2\ns_waitcnt vmcnt(0)\nL_e2:\ns_waitcnt vmcnt(17)\ns_barrier")
    for f in k2_rd_y(A, 0): f()
    for ks in range(4):
        interleave(A, k2_mf_y(A, ks), k2_rd_y(A, ks+1) if ks < 3 else [], every=2)
    A("s_cmp_eq_u64 s[76:77], 0\ns_cbranch_scc1 L_e3\ns_mov_b64 exec, s[70:71]")
    poll(A, "L_pb", "s[70:71]")
    A("s_mov_b64 exec, -1")
    stamp(A, opt, 5)
    A.vm = []
    odma()
    A("L_e3:")
    def rd(hp):
        def f(hd):
            if hd == 0: A.wait_vm(("o", hp))
            A.ds(f"ds_read_b128 {vr(OF+8*hp+4*hd,4)}, v{9+2*hd} offset:{hp*2048}", ("of", 2*hp+hd))
        return [lambda: f(0), lambda: f(1)]
    def mf(h):
        def g(ct):
            if ct == 0: A.wait_lg(("of", h))
            d = vr(AB+4*ct, 4)
            A(f"v_mfma_f32_16x16x32_bf16 {d}, {ar(16*h+4*ct,4)}, {vr(OF+4*h,4)}, {'0' if h == 0 else d}")
        return [lambda ct=ct: g(ct) for ct in range(4)]
    for f in rd(0): f()
    for hp in range(8):
        interleave(A, mf(2*hp) + mf(2*hp+1), rd(hp+1) if hp < 7 else [], every=2, start=1)
        if hp == 0: stamp(A, opt, 6)
    k2_final(A)
    A("L_fin:")
    return A
```

```python
from asmlib import *
O_WS, Y_WS, G_WS, T_WS = 0, 2 << 20, 4 << 20, 5 << 20
WS_BYTES = 6 << 20
XB, WB, HB = 2048 * 896, 448 * 2688, 448 * 896

def load_ptrs(A):
    A("s_load_dwordx16 s[4:19], s[0:1], 0\ns_load_dwordx8 s[20:27], s[0:1], 64")

def stamp(A, opt, slot):
    if not opt.get("stamp"): return
    A(f"s_memrealtime s[{80+2*slot}:{81+2*slot}]")

def stamp_store(A, opt, base, nst):
    if not opt.get("stamp"): return
    A("s_waitcnt lgkmcnt(0)")
    A(f"s_lshl_b32 s3, s2, 2\ns_add_u32 s3, s3, s44\ns_lshl_b32 s3, s3, 5\ns_add_u32 s3, s3, {T_WS + base}")
    for i in range(nst):
        A(f"v_mov_b32 v1, s{80+2*i}\nv_mov_b32 v2, s3\nbuffer_store_dword v1, v2, s[40:43], 0 offen offset:{4*i}")

def interleave(A, main, fill, every=1, start=0):
    fill = list(fill); n = len(main)
    for i, m in enumerate(main):
        m()
        if i >= start:
            left = n - i
            k = -(-len(fill) // left) if every == 0 else every
            for _ in range(min(k, len(fill))): fill.pop(0)()
    for f in fill: f()

def band_masks():
    ma, mb, mb0 = [], [], []
    for r in range(4):
        a = b = b0 = 0
        for lane in range(64):
            l, kg = lane & 15, lane >> 4
            kp = 4 * kg + r
            if kp >= l + 9: a |= 1 << lane
            if 0 <= l - kp <= 7:
                b |= 1 << lane
                if kp >= 7: b0 |= 1 << lane
        ma.append(a); mb.append(b); mb0.append(b0)
    return ma, mb, mb0

def qkv_role(A, opt):
    st = opt.get("st", "")
    SL = 36864
    srd(A, 28, 4, XB); srd(A, 32, 16, WB)
    A("""
s_and_b32 s48, s47, 1
s_lshl_b32 s49, s46, 1
s_add_u32 s48, s48, s49
s_lshr_b32 s49, s47, 1
s_lshr_b32 s50, s44, 1
s_and_b32 s51, s44, 1
v_lshrrev_b32 v2, 3, v1
v_and_b32 v3, 7, v1
v_lshrrev_b32 v4, 1, v2
v_lshlrev_b32 v5, 1, v4
v_xor_b32 v5, v3, v5
v_lshrrev_b32 v6, 2, v2
v_and_b32 v7, 3, v2
v_lshl_add_u32 v6, v6, 3, v7
s_lshl_b32 s52, s50, 5
s_lshl_b32 s53, s51, 2
s_add_u32 s52, s52, s53
v_add_u32 v6, s52, v6
s_movk_i32 s53, 2688
s_mul_i32 s54, s48, 112
v_mul_u32_u24 v6, s53, v6
v_lshl_add_u32 v6, v5, 4, v6
v_add_u32 v6, s54, v6
v_cmp_eq_u32 vcc, 7, v5
v_bfrev_b32 v7, 1
s_mul_i32 s55, s50, 12288
v_cndmask_b32 v32, v6, v7, vcc
s_lshl_b32 s56, s51, 11
s_add_u32 s55, s55, s56
s_mul_i32 s56, s44, 3072
s_add_u32 s56, s56, 24576
s_mul_i32 s57, s49, 86
s_mul_i32 s58, s44, 24
s_add_u32 s57, s57, s58
s_sub_u32 s57, s57, 7
s_lshl_b32 s57, s57, 1
s_add_u32 s57, s57, s45
s_mul_i32 s57, s57, 896
s_movk_i32 s58, 1792
v_mul_u32_u24 v8, s58, v2
v_add_u32 v8, s57, v8
v_xor_b32 v9, v3, v4
s_lshl_b32 s59, s51, 2
v_xor_b32 v9, s59, v9
v_xor_b32 v10, 4, v9
v_lshl_add_u32 v33, v9, 4, v8
v_lshl_add_u32 v34, v10, 4, v8
v_add_u32 v34, 14336, v34
v_add_u32 v35, 28672, v33""")
    def dma(c):
        slot = c % 4; out = []
        for kp in range(2):
            for sec in range(3):
                def f(kp=kp, sec=sec):
                    A(f"s_add_u32 m0, s55, {slot*SL + sec*4096 + kp*1024 - sec*896}\ns_mov_b32 s60, {c*172032 + kp*43008}")
                    A.vmem(f"buffer_load_dwordx4 v32, s[32:35], s60 offen offset:{sec*896} lds", ("d", c))
                out.append(f)
        for i in range(3):
            def f(i=i):
                A(f"s_add_u32 m0, s56, {slot*SL + i*1024 - c*128}\ns_nop 0")
                A.vmem(f"buffer_load_dwordx4 v{33+i}, s[28:31], 0 offen offset:{c*128} lds", ("d", c))
            out.append(f)
        return out
    for c in range(4):
        for f in dma(c): f()
    if opt.get("_pre"): opt["_pre"](A)
    A(f"""
v_lshrrev_b32 v2, 4, v1
v_bfe_u32 v3, v1, 2, 2
v_and_b32 v4, 3, v1
v_and_b32 v5, 1, v2
v_lshl_add_u32 v5, v5, 2, v3
v_lshrrev_b32 v6, 1, v2
v_lshlrev_b32 v6, 10, v6
v_lshl_add_u32 v6, v5, 7, v6
v_and_b32 v7, 6, v5
s_mul_i32 s61, s51, 56
v_lshl_add_u32 v8, v4, 3, s61
v_add_u32 v9, 32, v8
v_lshrrev_b32 v10, 4, v8
v_xor_b32 v10, v10, v7
v_and_b32 v8, 8, v8
v_lshl_add_u32 v10, v10, 4, v8
v_add_u32 v16, v6, v10
v_lshrrev_b32 v10, 4, v9
v_xor_b32 v10, v10, v7
v_lshl_add_u32 v10, v10, 4, v8
v_add_u32 v17, v6, v10
v_and_b32 v3, 15, v1
v_lshrrev_b32 v4, 1, v3
v_xor_b32 v4, v4, v2
s_mul_i32 s61, s50, 6144
s_add_u32 s61, s61, 24576
v_lshlrev_b32 v5, 7, v3
v_add_u32 v5, s61, v5
v_lshl_add_u32 v18, v4, 4, v5
v_xor_b32 v19, 64, v18""")
    for s in range(1, 4):
        for i in range(4): A(f"v_add_u32 v{16+4*s+i}, {s*SL}, v{16+i}")
    A(f"""
s_mul_i32 s61, s44, 3072
s_add_u32 s61, s61, 36864
v_lshrrev_b32 v4, 2, v3
v_xor_b32 v4, v4, v2
v_lshlrev_b32 v4, 4, v4
v_lshl_add_u32 v4, v3, 6, v4
v_add_u32 v14, s61, v4
v_xor_b32 v4, v1, v2
v_lshl_add_u32 v15, v4, 4, s61
v_lshrrev_b32 v3, 2, v1
s_mul_i32 s61, s50, 48
v_add_u32 v4, s61, v3
s_mul_i32 s62, s49, 86
s_sub_u32 s62, s62, 7
v_add_u32 v5, s62, v4
v_and_b32 v6, 15, v5
v_lshl_add_u32 v6, v6, 1, s45
v_ashrrev_i32 v7, 4, v5
v_lshl_add_u32 v6, v6, 6, v7
s_lshl_b32 s63, s48, 1
s_add_u32 s63, s63, s51
v_lshl_add_u32 v6, v6, 4, s63
v_and_b32 v7, 3, v1
v_lshl_add_u32 v6, v6, 2, v7
v_lshlrev_b32 v6, 4, v6
v_bfrev_b32 v7, 1
s_sub_u32 s63, 1031, s62
s_sub_u32 s63, s63, 14
s_min_u32 s63, s63, 86""")
    for T in range(3):
        A(f"v_add_u32 v8, {16*T-7}, v4\nv_cmp_gt_u32 vcc, s63, v8\nv_add_u32 v9, {1024*T}, v6\ns_nop 0\nv_cndmask_b32 v{11+T}, v7, v9, vcc")
    ma, mb, mb0 = band_masks()
    A("s_or_b32 s61, s49, s50\ns_cmp_eq_u32 s61, 0")
    for r in range(4):
        for hi in range(2):
            x, y = (mb0[r] >> (32*hi)) & 0xffffffff, (mb[r] >> (32*hi)) & 0xffffffff
            A(f"s_mov_b32 s{72+2*r+hi}, {y:#x}")
            if x != y: A(f"s_cselect_b32 s{72+2*r+hi}, {x:#x}, s{72+2*r+hi}")
    FS = [36, 72]
    def reads(n):
        c, ksl = divmod(n, 2); b = 16 + 4 * (c % 4); f = FS[n & 1]; out = []
        for t in range(3):
            out.append(lambda t=t: A.ds(f"ds_read_b128 {vr(f+4*t,4)}, v{b+2+ksl} offset:{t*2048}", ("x", n)))
        for sec in range(3):
            for ft in range(2):
                for j in range(2):
                    out.append(lambda sec=sec, ft=ft, j=j: A.ds(
                        f"ds_read_b64_tr_b16 {vr(f+12+(sec*2+ft)*4+2*j,2)}, v{b+ft} offset:{((ksl*3+sec)*2+j)*2048}", ("w", n, sec, ft)))
        return out
    def mf(n):
        f = FS[n & 1]; out = []
        for sec in range(3):
            for ft in range(2):
                for t in range(3):
                    def g(sec=sec, ft=ft, t=t):
                        if t == 0: A.wait_lg(("x", n), ("w", n, sec, ft))
                        d = 108 + sec*24 + (t*2+ft)*4; wv = f+12+(sec*2+ft)*4; xv = f+4*t
                        A(mfma(d, wv, xv, "0" if n == 0 else None) if sec < 2 else mfma(d, xv, wv, "0" if n == 0 else None))
                    out.append(g)
        return out
    A.wait_vm(("d", 0)); A("s_barrier")
    stamp(A, opt, 1)
    for f in reads(0): f()
    for n in range(14):
        m = mf(n)
        if n == 13:
            for g in m: g()
        elif n & 1:
            c = n // 2
            for g in m[:6]: g()
            A.wait_lg0(); A.wait_vm(("d", c+1)); A("s_barrier")
            fill = reads(n+1)
            if c + 4 < 7:
                d = dma(c+4); fill = fill[:15] + d
            if opt.get("_fill"): fill = fill + opt["_fill"](A, c)
            interleave(A, m[6:], fill, every=2)
        else:
            interleave(A, m, reads(n+1), every=1)
    stamp(A, opt, 2)
    Q = lambda t: 36 + 4*t
    K = lambda T: 48 + 4*(T+1)
    V = lambda ft, T: 64 + 8*ft + 2*(T+1)
    S = lambda T: 84 + 8*T
    acc = lambda sec, t, ft: 108 + sec*24 + (t*2+ft)*4
    def pk(d, s): A(f"v_cvt_pk_bf16_f32 v{d}, v{s}, v{s+1}\nv_cvt_pk_bf16_f32 v{d+1}, v{s+2}, v{s+3}")
    for r in range(4):
        for hi in range(2):
            A(f"s_mov_b32 s{56+2*r+hi}, {(ma[r] >> (32*hi)) & 0xffffffff:#x}\ns_mov_b32 s{64+2*r+hi}, {(mb[r] >> (32*hi)) & 0xffffffff:#x}")
    for ft in range(2): pk(K(2)+2*ft, acc(1, 2, ft))
    A("v_lshlrev_b32 v2, 4, v1\ns_lshl_b32 s52, s44, 11\ns_add_u32 s52, s52, 147456\nv_add_u32 v3, s52, v2\ns_lshl_b32 s52, s51, 11\ns_add_u32 s52, s52, 147456\nv_add_u32 v4, s52, v2")
    for ft in range(2): pk(V(ft, 2), acc(2, 2, ft))
    A.ds(f"ds_write_b128 v3, {vr(K(2),4)}", "hw")
    A.ds(f"ds_write_b64 v3, {vr(V(0,2),2)} offset:1024", "hw")
    A.ds(f"ds_write_b64 v3, {vr(V(1,2),2)} offset:1032", "hw")
    for t in range(3):
        for ft in range(2): pk(Q(t)+2*ft, acc(0, t, ft))
    for t in range(2):
        for ft in range(2): pk(K(t)+2*ft, acc(1, t, ft)); pk(V(ft, t), acc(2, t, ft))
    A("s_mov_b32 exec_lo, 0\ns_mov_b32 exec_hi, 0xffff0000")
    for t in range(3): A(f"v_mov_b32 v{Q(t)+2}, 0\nv_mov_b32 v{Q(t)+3}, 0")
    A("s_mov_b64 exec, -1")
    for i in range(4): A(f"v_mov_b32 v{80+i}, 0x3f803f80")
    A("v_mov_b32 v10, 0xf149f2ca")
    A.wait_lg0(); A.wait_vm("wo"); A("s_barrier")
    A.ds(f"ds_read_b128 {vr(K(-1),4)}, v4", "hk")
    A.ds(f"ds_read_b64 {vr(V(0,-1),2)}, v4 offset:1024", "hv")
    A.ds(f"ds_read_b64 {vr(V(1,-1),2)}, v4 offset:1032", "hv")
    for T in (2, 1):
        A(mfma(S(T), K(T-1), Q(T), "0")); A(mfma(S(T)+4, K(T), Q(T), "0"))
    A(mfma(S(0)+4, K(0), Q(0), "0"))
    A.wait_lg("hk"); A(mfma(S(0), K(-1), Q(0), "0"))
    A("s_mov_b32 s52, 0x3e8b97f6\ns_nop 2")
    U = (2, 1, 0)
    for T in U:
        if T == 0: A("s_nop 0")
        for i in range(8):
            mk = 56 + 2*i if i < 4 else ((72 if T == 0 else 64) + 2*(i-4))
            A(f"v_cndmask_b32 v{S(T)+i}, v10, v{S(T)+i}, s[{mk}:{mk+1}]")
    M = lambda T: 156 + T
    TT = lambda T: 160 + T
    for T in U: A(f"v_max3_f32 v{M(T)}, v{S(T)}, v{S(T)+1}, v{S(T)+2}")
    for T in U: A(f"v_max3_f32 v{M(T)}, v{M(T)}, v{S(T)+3}, v{S(T)+4}")
    for T in U: A(f"v_max3_f32 v{M(T)}, v{M(T)}, v{S(T)+5}, v{S(T)+6}")
    for T in U: A(f"v_max_f32 v{M(T)}, v{M(T)}, v{S(T)+7}")
    for sw in (16, 32):
        for T in U: A(f"v_mov_b32 v{TT(T)}, v{M(T)}")
        for T in U: A(f"v_permlane{sw}_swap_b32 v{M(T)}, v{TT(T)}")
        for T in U: A(f"v_max_f32 v{M(T)}, v{M(T)}, v{TT(T)}")
    for T in U: A(f"v_mul_f32 v{M(T)}, s52, v{M(T)}")
    P = lambda T: 108 + 4*T
    O = lambda T: 120 + 12*T
    A.wait_lg0()
    for T in U:
        for i in range(8): A(f"v_fma_f32 v{S(T)+i}, v{S(T)+i}, s52, -v{M(T)}")
        for i in range(8): A(f"v_exp_f32 v{S(T)+i}, v{S(T)+i}")
        for i in range(4): A(f"v_cvt_pk_bf16_f32 v{P(T)+i}, v{S(T)+2*i}, v{S(T)+2*i+1}")
        A("s_nop 1")
        A(mfma(O(T)+8, 80, P(T), "0")); A(mfma(O(T), V(0, T-1), P(T), "0")); A(mfma(O(T)+4, V(1, T-1), P(T), "0"))
    A("s_mov_b32 s52, -1\ns_mov_b32 s53, 0xffff")
    for T in U:
        if T == 0: A("s_nop 1")
        A(f"v_rcp_f32 v{O(T)+8}, v{O(T)+8}\ns_nop 0")
        for i in range(8): A(f"v_mul_f32 v{O(T)+i}, v{O(T)+i}, v{O(T)+8}")
        d = 164 + 4*T
        for i in range(4): A(f"v_cvt_pk_bf16_f32 v{d+i}, v{O(T)+2*i}, v{O(T)+2*i+1}")
        A(f"v_cndmask_b32 v{d+2}, 0, v{d+2}, s[52:53]\nv_cndmask_b32 v{d+3}, 0, v{d+3}, s[52:53]")
        A.ds(f"ds_write_b128 v14, {vr(d,4)} offset:{1024*T}", ("tw", T))
        A.ds(f"ds_read_b128 {vr(180+4*T,4)}, v15 offset:{1024*T}", ("tr", T))
        for X in ([T+1] if T < 2 else []) + ([0] if T == 0 else []):
            A.wait_lg(("tr", X))
            A.vmem(f"buffer_store_dwordx4 {vr(180+4*X,4)}, v{11+X}, s[40:43], 0 offen {st}", "st")

def dft_role(A, opt):
    st = opt.get("st", "")
    SL = 32768
    srd(A, 28, 4, XB); srd(A, 32, 10, HB); srd(A, 36, 12, HB)
    A(f"""
s_sub_u32 s48, s47, 24
s_lshl_b32 s49, s48, 3
s_add_u32 s49, s49, s45
s_lshl_b32 s50, s46, 2
s_add_u32 s50, s50, s44
s_lshl_b32 s51, s50, 4
s_cmp_eq_u32 s50, 15
s_cselect_b32 s32, s20, s32
s_cselect_b32 s33, s21, s33
s_cselect_b32 s34, 896, s34
s_cselect_b32 s52, 0, s51
v_lshrrev_b32 v2, 3, v1
v_and_b32 v3, 7, v1
v_lshrrev_b32 v4, 1, v2
v_xor_b32 v4, v3, v4
v_lshlrev_b32 v4, 4, v4
s_lshl_b32 s53, s44, 1
s_add_u32 s53, s53, s49
s_mul_i32 s53, s53, 896
s_mov_b32 s54, 57344
v_mad_u32_u24 v5, v2, s54, v4
v_add_u32 v32, s53, v5
v_xor_b32 v33, 64, v32
v_add_u32 v33, {8*57344}, v33
s_movk_i32 s54, 896
v_mad_u32_u24 v5, v2, s54, v4
s_mul_i32 s55, s52, 896
v_add_u32 v34, s55, v5
v_xor_b32 v35, 64, v34
v_add_u32 v35, 7168, v35
s_lshl_b32 s56, s44, 12
s_add_u32 s56, s56, 1024
s_lshl_b32 s57, s44, 11
s_add_u32 s57, s57, 17408
s_mov_b32 s58, 917504""")
    def dma(c):
        slot = c % 4; out = []
        for cs in range(2):
            for hf in range(2):
                def f(cs=cs, hf=hf):
                    A(f"s_add_u32 m0, s57, {slot*SL + cs*8192 + hf*1024 - c*128}\ns_nop 0")
                    A.vmem(f"buffer_load_dwordx4 v{34+hf}, s[{32+4*cs}:{35+4*cs}], 0 offen offset:{c*128} lds", ("d", c))
                out.append(f)
        for ts in range(2):
            for hf in range(2):
                def f(ts=ts, hf=hf):
                    off = slot*SL + ts*2048 + hf*1024 - c*128
                    A(f"s_add_u32 m0, s56, {off}\ns_nop 0")
                    A.vmem(f"buffer_load_dwordx4 v{32+hf}, s[28:31], {'s58' if ts else '0'} offen offset:{c*128} lds", ("d", c))
                out.append(f)
        return out
    for c in range(4):
        for f in dma(c): f()
    if opt.get("_pre"): opt["_pre"](A)
    A("""
v_lshrrev_b32 v2, 4, v1
v_and_b32 v3, 15, v1
v_lshrrev_b32 v4, 1, v3
v_xor_b32 v4, v4, v2
v_lshlrev_b32 v5, 7, v3
v_lshl_add_u32 v16, v4, 4, v5
v_xor_b32 v17, 64, v16
v_add_u32 v18, s57, v16
v_add_u32 v19, s57, v17
v_add_u32 v16, 1024, v16
v_add_u32 v17, 1024, v17""")
    for s in range(1, 4):
        for i in range(4): A(f"v_add_u32 v{16+4*s+i}, {s*SL}, v{16+i}")
    A("v_cvt_f32_u32 v4, v3\nv_mul_f32 v4, 0x3d000000, v4\nv_add_f32 v5, 0.5, v4\nv_lshlrev_b32 v6, 2, v2\nv_cvt_f32_u32 v6, v6")
    import struct
    fl = lambda x: hex(struct.unpack("<I", struct.pack("<f", x))[0])
    for i in range(8): A(f"v_add_f32 v{36+i}, {fl(16*(i>>2) + (i&3))}, v6")
    for kt in range(2):
        for i in range(8): A(f"v_mul_f32 v{44+i}, v{4+kt}, v{36+i}")
        for i in range(8): A(f"v_fract_f32 v{44+i}, v{44+i}")
        for i in range(8): A(f"v_cos_f32 v{52+i}, v{44+i}")
        for i in range(8): A(f"v_sin_f32 v{60+i}, v{44+i}")
        for i in range(4): A(f"v_cvt_pk_bf16_f32 v{180+4*kt+i}, v{52+2*i}, v{53+2*i}")
        for i in range(4): A(f"v_cvt_pk_bf16_f32 v{188+4*kt+i}, v{60+2*i}, v{61+2*i}")
        for i in range(4): A(f"v_xor_b32 v{196+4*kt+i}, 0x80008000, v{188+4*kt+i}")
    A(f"""
s_lshl_b32 s59, s48, 1
s_add_u32 s59, s59, s45
s_lshl_b32 s59, s59, 12
s_lshl_b32 s60, s51, 4
s_add_u32 s59, s59, s60
s_add_u32 s59, s59, {Y_WS}
v_lshlrev_b32 v11, 18, v2
v_lshl_add_u32 v11, v3, 4, v11
v_add_u32 v11, s59, v11
s_lshl_b32 s59, s49, 7
s_add_u32 s59, s59, {G_WS}
v_lshl_add_u32 v12, v2, 4, s59
v_cmp_eq_u32 vcc, 0, v3
v_bfrev_b32 v7, 1
s_nop 0
v_cndmask_b32 v12, v7, v12, vcc""")
    FS = [36, 76]
    def reads(n):
        c, ksl = divmod(n, 2); b = 16 + 4 * (c % 4); f = FS[n & 1]; out = []
        for cs in range(2):
            out.append(lambda cs=cs: A.ds(f"ds_read_b128 {vr(f+32+4*cs,4)}, v{b+2+ksl} offset:{cs*8192}", ("w", n)))
        for rt in range(8):
            out.append(lambda rt=rt: A.ds(f"ds_read_b128 {vr(f+4*rt,4)}, v{b+ksl} offset:{rt*2048}", ("x", n, rt)))
        return out
    def mf(n):
        f = FS[n & 1]; out = []
        for rt in range(8):
            for cs in range(2):
                def g(rt=rt, cs=cs):
                    if cs == 0: A.wait_lg(("w", n), ("x", n, rt))
                    A(mfma(116 + 32*cs + 4*rt, f+4*rt, f+32+4*cs, "0" if n == 0 else None))
                out.append(g)
        return out
    A.wait_vm(("d", 0)); A("s_barrier")
    stamp(A, opt, 1)
    for f in reads(0): f()
    for n in range(14):
        m = mf(n)
        if n == 13:
            for g in m: g()
        elif n & 1:
            c = n // 2
            for g in m[:6]: g()
            A.wait_lg0(); A.wait_vm(("d", c+1)); A("s_barrier")
            fill = reads(n+1)
            if c + 4 < 7: fill = fill + dma(c+4)
            if opt.get("_fill"): fill = fill + opt["_fill"](A, c)
            interleave(A, m[6:], fill, every=2)
        else:
            interleave(A, m, reads(n+1), every=1)
    stamp(A, opt, 2)
    A.wait_vm("wo"); A("s_barrier")
    A("s_cmp_eq_u32 s50, 15\ns_cbranch_scc1 L_gate\ns_nop 5")
    for u in range(4):
        for cs in range(2):
            for ts in range(2):
                s = 116 + 32*cs + 4*(2*u+ts); d = 36 + 16*cs + 4*u + 2*ts
                A(f"v_cvt_pk_bf16_f32 v{d}, v{s}, v{s+1}\nv_cvt_pk_bf16_f32 v{d+1}, v{s+2}, v{s+3}")
    A("s_nop 1")
    YR = lambda u, kt: 116 + (u*2+kt)*4
    for kt in range(2):
        for u in range(4):
            A(mfma(YR(u, kt), 180+4*kt, 36+4*u, "0")); A(mfma(YR(u, kt)+32, 196+4*kt, 36+4*u, "0"))
        for u in range(4):
            A(mfma(YR(u, kt), 188+4*kt, 52+4*u)); A(mfma(YR(u, kt)+32, 180+4*kt, 52+4*u))
    for kt in range(2):
        if kt == 1: A("s_nop 0")
        for r in range(4):
            d = 68 + 4*(kt*4+r)
            for ri in range(2):
                for up in range(2):
                    A(f"v_cvt_pk_bf16_f32 v{d+2*ri+up}, v{YR(2*up,kt)+32*ri+r}, v{YR(2*up+1,kt)+32*ri+r}")
            A(f"s_mov_b32 s60, {(16*kt+r)*65536}")
            A.vmem(f"buffer_store_dwordx4 {vr(d,4)}, v11, s[40:43], s60 offen {st}", "st")
    A("s_branch L_k1_fin\nL_gate:\ns_nop 7")
    for rt in range(8):
        A(f"buffer_store_dwordx4 {vr(116+4*rt,4)}, v12, s[40:43], 0 offen offset:{(rt>>1)*256 + (rt&1)*64} {st}")

def k1_body(opt):
    A = Asm()
    A("s_cmp_ge_u32 s2, 256\ns_cbranch_scc1 L_k1_end")
    stamp(A, opt, 0)
    load_ptrs(A)
    A("v_lshrrev_b32 v2, 6, v0\nv_and_b32 v1, 63, v0\ns_and_b32 s45, s2, 1\nv_readfirstlane_b32 s44, v2\ns_bfe_u32 s46, s2, 0x20001\ns_lshr_b32 s47, s2, 3\ns_waitcnt lgkmcnt(0)")
    srd(A, 40, 26, WS_BYTES)
    A("s_cmp_ge_u32 s47, 24\ns_cbranch_scc1 L_dft")
    qkv_role(A, opt)
    A("s_branch L_k1_fin\nL_dft:")
    A.vm = []; A.lg = []
    dft_role(A, opt)
    A("L_k1_fin:")
    return A
```

```python
from asmlib import *
from gen_k1 import *
import struct
fl = lambda x: hex(struct.unpack("<I", struct.pack("<f", x))[0])

def k2_setup(A, opt):
    fu = opt.get("_fused")
    if not fu: srd(A, 28, 18, HB)
    srd(A, 32, 22, XB)
    A("s_and_b32 s45, s2, 7\ns_lshr_b32 s46, s2, 3")
    if fu: A("s_sub_u32 s46, s46, 4")
    A(f"""
s_mul_i32 s47, s46, 37
s_lshr_b32 s47, s47, 8
s_mul_i32 s48, s47, 7
s_sub_u32 s48, s46, s48
s_lshr_b32 s49, s47, 1
s_lshl_b32 s45, s45, 1
s_add_u32 s45, s45, s49
s_sub_u32 s49, 32, s45
s_cmp_eq_u32 s45, 0
s_cselect_b32 s49, 16, s49
s_bitcmp1_b32 s47, 0
s_cselect_b32 s45, s49, s45
s_sub_u32 s49, 32, s45
s_and_b32 s49, s49, 31
s_lshl_b32 s50, s48, 2
s_add_u32 s50, s50, s44
s_lshl_b32 s50, s50, 4
v_and_b32 v3, 15, v1
v_lshrrev_b32 v2, 4, v1
v_add_u32 v4, s50, v3
v_sub_u32 v5, 448, v4
s_cmp_ge_u32 s50, 224
s_cselect_b32 s51, s49, s45
s_cselect_b64 vcc, -1, 0
s_lshl_b32 s51, s51, 16
s_add_u32 s51, s51, {Y_WS}
v_cndmask_b32 v4, v4, v5, vcc
v_lshlrev_b32 v4, 4, v4
v_lshl_add_u32 v4, v2, 12, v4
v_add_u32 v16, s51, v4
s_lshl_b32 s52, s44, 4
v_add_u32 v4, s52, v3
v_lshlrev_b32 v5, 10, v2
v_lshl_add_u32 v5, v4, 4, v5
s_lshl_b32 s53, s45, 16
v_add_u32 v17, s53, v5
v_and_b32 v5, 1, v4
v_lshl_add_u32 v5, v5, 5, s45
v_lshlrev_b32 v5, 5, v5
v_lshrrev_b32 v6, 1, v4
v_add_u32 v5, v5, v6
v_lshlrev_b32 v5, 2, v5
v_add_u32 v18, {G_WS}, v5
v_lshl_add_u32 v20, v4, 5, s45
s_movk_i32 s53, 896
v_mul_u32_u24 v5, s53, v20
v_lshl_add_u32 v5, v2, 3, v5
s_lshl_b32 s54, s48, 7
v_add_u32 v19, s54, v5
""");
    if not fu: A("""v_lshrrev_b32 v4, 3, v1
v_bfe_u32 v5, v1, 1, 2
v_lshrrev_b32 v6, 1, v4
v_xor_b32 v5, v5, v6
v_and_b32 v6, 1, v1
v_lshlrev_b32 v6, 4, v6
v_lshl_add_u32 v5, v5, 5, v6
v_mad_u32_u24 v5, v4, s53, v5
s_mul_i32 s55, s44, 7168
s_add_u32 s55, s55, s54
v_add_u32 v21, s55, v5
s_lshl_b32 s56, s44, 10""")
    A(f"""
s_lshl_b32 s57, s44, 12
s_add_u32 s57, s57, 61440
v_bfe_u32 v4, v1, 2, 4
v_bfe_u32 v5, v1, 3, 2
v_and_b32 v6, 3, v1
v_lshlrev_b32 v6, 3, v6
v_lshl_add_u32 v6, v4, 7, v6
v_lshl_add_u32 v22, v5, 5, v6
v_xor_b32 v23, 32, v22
v_xor_b32 v24, 64, v22
v_xor_b32 v25, 96, v22
v_lshlrev_b32 v26, 4, v1
v_add_u32 v26, 61440, v26""")

def k2_coefs(A):
    A(f"""v_cvt_f32_u32 v4, v20
v_mul_f32 v4, {fl(1/2048)}, v4
v_lshrrev_b32 v5, 1, v2
v_lshlrev_b32 v5, 3, v5
v_and_b32 v6, 1, v2
v_add_u32 v5, v5, v6
v_cvt_f32_u32 v5, v5
s_cmp_gt_u32 s48, 3
s_cselect_b32 s58, 0x80008000, 0
s_cmp_ge_u32 s48, 3
s_cselect_b32 s59, 0x80008000, 0""")
    for half in range(2):
        for i in range(8): A(f"v_add_f32 v{60+i}, {fl(32*half + 16*(i>>2) + 2*(i&3))}, v5")
        for i in range(8): A(f"v_mul_f32 v{60+i}, v4, v{60+i}")
        for i in range(8): A(f"v_fract_f32 v{60+i}, v{60+i}")
        for i in range(8): A(f"v_cos_f32 v{68+i}, v{60+i}")
        for i in range(8): A(f"v_sin_f32 v{76+i}, v{60+i}")
        for q in range(2):
            ks = 2*half + q
            for i in range(2): A(f"v_cvt_pk_bf16_f32 v{28+4*ks+i}, v{68+4*q+2*i}, v{69+4*q+2*i}")
            for i in range(2): A(f"v_cvt_pk_bf16_f32 v{30+4*ks+i}, v{76+4*q+2*i}, v{77+4*q+2*i}")
            for i in range(2): A(f"v_mov_b32 v{44+4*ks+i}, v{28+4*ks+i}")
            for i in range(2): A(f"v_xor_b32 v{46+4*ks+i}, s59, v{30+4*ks+i}")
            for i in range(2): A(f"v_xor_b32 v{30+4*ks+i}, s58, v{30+4*ks+i}")

QB = [range(0, 4), range(4, 8), range(8, 11), range(11, 15)]
OF = 124
def k2_wo(A, b):
    out = []
    for q in QB[b]:
        def f(q=q):
            A(f"s_add_u32 m0, s56, {q*4096}\ns_mov_b32 s60, {q*4*7168}")
            A.vmem("buffer_load_dwordx4 v21, s[28:31], s60 offen lds", ("wo", b))
        out.append(f)
    return out
def k2_o(A, b, ld):
    out = []
    for h in range(4*b, 4*b+4):
        def f(h=h):
            A(f"s_mov_b32 s60, {h*4096}")
            A.vmem(f"buffer_load_dwordx4 {vr(OF+4*h,4)}, v17, s[40:43], s60 offen {ld}", ("o", h))
        out.append(f)
    return out
def k2_y(A, ld):
    out = []
    for ks in range(4):
        def f(ks=ks):
            A(f"s_add_u32 m0, s57, {ks*1024}\ns_mov_b32 s60, {ks*16384}")
            A.vmem(f"buffer_load_dwordx4 v16, s[40:43], s60 offen {ld} lds", "y")
        out.append(f)
    return out
AY, AB = 92, 108
FR = [60, 76]
def k2_rd_wo(A, h):
    out = []
    for ct in range(4):
        for j in range(2):
            out.append(lambda ct=ct, j=j: A.ds(f"ds_read_b64_tr_b16 {vr(FR[h&1]+4*ct+2*j,2)}, v{22+(ct ^ (2*(h&1)))} offset:{(28*h+16*j)*128}", ("wf", h, ct)))
    return out
def k2_mf_wo(A, h):
    out = []
    for ct in range(4):
        def g(ct=ct):
            if ct == 0: A.wait_vm(("o", h))
            A.wait_lg(("wf", h, ct))
            A(mfma(AB+4*ct, FR[h&1]+4*ct, OF+4*h, "0" if h == 0 else None))
        out.append(g)
    return out
def k2_rd_y(A, ks):
    return [lambda ct=ct: A.ds(f"ds_read_b128 {vr(FR[ks&1]+4*ct,4)}, v26 offset:{(ct*4+ks)*1024}", ("yf", ks, ct)) for ct in range(4)]
def k2_mf_y(A, ks):
    out = []
    for ct in range(4):
        def g(ct=ct):
            A.wait_lg(("yf", ks, ct))
            A(mfma(AY+4*ct, FR[ks&1]+4*ct, (28 if ct < 2 else 44)+4*ks, "0" if ks == 0 else None))
        out.append(g)
    return out
def k2_final(A):
    A.wait_vm("g")
    A(f"v_mul_f32 v27, {fl(-1.4426950408889634)}, v27\nv_exp_f32 v27, v27\ns_nop 0\nv_add_f32 v27, 1.0, v27\nv_rcp_f32 v27, v27\ns_nop 3")
    for ct in range(4):
        for r in range(4): A(f"v_sub_f32 v{AY+4*ct+r}, v{AY+4*ct+r}, v{AB+4*ct+r}")
        for r in range(4): A(f"v_fma_f32 v{AY+4*ct+r}, v{AY+4*ct+r}, v27, v{AB+4*ct+r}")
        for i in range(2): A(f"v_cvt_pk_bf16_f32 v{60+2*ct+i}, v{AY+4*ct+2*i}, v{AY+4*ct+2*i+1}")
        A.vmem(f"buffer_store_dwordx2 {vr(60+2*ct,2)}, v19, s[32:35], 0 offen offset:{ct*32}", "st")

def k2_body(opt):
    A = Asm()
    A("s_cmp_ge_u32 s2, 224\ns_cbranch_scc1 L_k2_end")
    stamp(A, opt, 0)
    load_ptrs(A)
    A("v_lshrrev_b32 v2, 6, v0\nv_and_b32 v1, 63, v0\ns_nop 0\nv_readfirstlane_b32 s44, v2\ns_waitcnt lgkmcnt(0)")
    srd(A, 40, 26, WS_BYTES)
    k2_setup(A, opt)
    for f in k2_y(A, ""): f()
    for b in range(2):
        for f in k2_wo(A, b) + k2_o(A, b, ""): f()
    A.vmem("buffer_load_dword v27, v18, s[40:43], 0 offen", "g")
    k2_coefs(A)
    A.wait_vm("y"); A("s_barrier")
    stamp(A, opt, 1)
    for f in k2_rd_y(A, 0): f()
    late = k2_wo(A, 2) + k2_o(A, 2, "") + k2_wo(A, 3) + k2_o(A, 3, "")
    for ks in range(4):
        if ks == 3:
            A.wait_vm(("wo", 0)); A("s_barrier")
        nxt = k2_rd_y(A, ks+1) if ks < 3 else k2_rd_wo(A, 0)
        interleave(A, k2_mf_y(A, ks), nxt + [late.pop(0) for _ in range(2)], every=2)
    for h in range(16):
        if h % 4 == 3 and h < 15:
            A.wait_vm(("wo", h//4 + 1)); A("s_barrier")
        nxt = k2_rd_wo(A, h+1) if h < 15 else []
        ex = [late.pop(0) for _ in range(min(2, len(late)))]
        interleave(A, k2_mf_wo(A, h), nxt + ex, every=2)
    stamp(A, opt, 2)
    k2_final(A)
    return A
```

```python
import sys
from asmlib import *
from gen_k1 import *
from gen_k2 import *
from gen_f import *
NAME = "gated_mix__spectral_fnet__sliding_local_dilated__prompt"
def two_kernel(opt):
    hdr = "".join(l for l in open(f"cdna_kernels/{NAME}.s.ref") if l.startswith(";") and "@launch" not in l)
    s = hdr + "; @launch kernel=phase1_kernel grid=(256,1,1) block=(256,1,1) lds=155648\n; @launch kernel=phase2_kernel grid=(224,1,1) block=(256,1,1) lds=77824\n"
    s += '.amdgcn_target "amdgcn-amd-amdhsa--gfx950"\n.text\n'
    A = k1_body(opt); stamp(A, opt, 3); stamp_store(A, opt, 0, 4); A("L_k1_end:\ns_endpgm")
    s += kernel_head("phase1_kernel") + A.text()
    A = k2_body(opt); stamp(A, opt, 3); stamp_store(A, opt, 65536, 4); A("L_k2_end:\ns_endpgm")
    s += kernel_head("phase2_kernel") + A.text()
    s += '.section .rodata,"a"\n' + kernel_desc("phase1_kernel", 256) + kernel_desc("phase2_kernel", 256)
    return s
def one_kernel(opt):
    hdr = "".join(l for l in open(f"cdna_kernels/{NAME}.s.ref") if l.startswith(";") and "@launch" not in l)
    s = "; @launch grid=(256,1,1) block=(256,1,1) lds=155648\n" + hdr
    s += '.amdgcn_target "amdgcn-amd-amdhsa--gfx950"\n.text\n'
    A = fused_body(opt)
    if opt.get("stamp"): A("s_memrealtime s[94:95]")
    stamp_store(A, opt, 0, 8); A("L_end:\ns_endpgm")
    s += kernel_head(NAME + "_kernel") + A.text()
    s += '.section .rodata,"a"\n' + kernel_desc(NAME + "_kernel", int(opt.get("vg", 512)), 102)
    return s
if __name__ == "__main__":
    out = sys.argv[1]; opt = dict(a.split("=") for a in sys.argv[2:])
    open(out, "w").write(two_kernel(opt) if opt.get("two") else one_kernel(opt))
```

```python
import sys
from asmlib import *
from gen_k1 import *
from gen_k2 import *
from gen_f import *
NAME = "gated_mix__spectral_fnet__sliding_local_dilated__prompt"
def two_kernel(opt):
    hdr = "".join(l for l in open(f"cdna_kernels/{NAME}.s.ref") if l.startswith(";") and "@launch" not in l)
    s = hdr + "; @launch kernel=phase1_kernel grid=(256,1,1) block=(256,1,1) lds=155648\n; @launch kernel=phase2_kernel grid=(224,1,1) block=(256,1,1) lds=77824\n"
    s += '.amdgcn_target "amdgcn-amd-amdhsa--gfx950"\n.text\n'
    A = k1_body(opt); stamp(A, opt, 3); stamp_store(A, opt, 0, 4); A("L_k1_end:\ns_endpgm")
    s += kernel_head("phase1_kernel") + A.text()
    A = k2_body(opt); stamp(A, opt, 3); stamp_store(A, opt, 65536, 4); A("L_k2_end:\ns_endpgm")
    s += kernel_head("phase2_kernel") + A.text()
    s += '.section .rodata,"a"\n' + kernel_desc("phase1_kernel", 256) + kernel_desc("phase2_kernel", 256)
    return s
def one_kernel(opt):
    hdr = "".join(l for l in open(f"cdna_kernels/{NAME}.s.ref") if l.startswith(";") and "@launch" not in l)
    s = "; @launch grid=(256,1,1) block=(256,1,1) lds=155648\n" + hdr
    s += '.amdgcn_target "amdgcn-amd-amdhsa--gfx950"\n.text\n'
    A = fused_body(opt)
    if opt.get("stamp"): A("s_memrealtime s[94:95]")
    dg = opt.get("dg")
    if dg:
        A("s_waitcnt lgkmcnt(0)")
        if dg == "x": A("s_getreg_b32 s61, hwreg(HW_REG_XCC_ID, 0, 4)\ns_sub_u32 s61, s61, s2\ns_and_b32 s61, s61, 7\ns_mul_i32 s61, s61, 125")
        else: A(f"s_sub_u32 s61, s{80+2*int(dg)}, s80\ns_cmp_lt_u32 s2, 32\ns_cselect_b32 s61, 0, s61")
        A("s_min_u32 s61, s61, 4000\ns_lshl_b32 s61, s61, 2\ns_add_u32 s61, s61, 3000\nL_dg:\ns_memrealtime s[62:63]\ns_waitcnt lgkmcnt(0)\ns_sub_u32 s62, s62, s80\ns_cmp_lt_u32 s62, s61\ns_cbranch_scc1 L_dg")
    else: stamp_store(A, opt, 0, 8)
    A("L_end:\ns_endpgm")
    s += kernel_head(NAME + "_kernel") + A.text()
    s += '.section .rodata,"a"\n' + kernel_desc(NAME + "_kernel", int(opt.get("vg", 512)), 102)
    return s
if __name__ == "__main__":
    out = sys.argv[1]; opt = dict(a.split("=") for a in sys.argv[2:])
    open(out, "w").write(two_kernel(opt) if opt.get("two") else one_kernel(opt))
```

```python
from asmlib import *
from gen_k1 import *
from gen_k2 import *
FL_WS = G_WS + 65536
FR_ST = 1280
WA = 110592
OB = 77824
def pre(A):
    A(f"""
s_mov_b32 s96, s18
s_mov_b32 s97, s19
s_cmp_lt_u32 s2, 32
s_cselect_b32 s98, 0, {HB}
s_mov_b32 s99, 0x20000
s_sub_u32 s88, s47, 4
s_mul_i32 s89, s88, 37
s_lshr_b32 s89, s89, 8
s_mul_i32 s89, s89, 7
s_sub_u32 s88, s88, s89
s_lshl_b32 s88, s88, 7
s_mul_i32 s89, s44, 7168
s_add_u32 s88, s88, s89
s_movk_i32 s89, 896
v_lshrrev_b32 v4, 3, v1
v_bfe_u32 v5, v1, 1, 2
v_lshrrev_b32 v6, 1, v4
v_xor_b32 v5, v5, v6
v_and_b32 v6, 1, v1
v_lshlrev_b32 v6, 4, v6
v_lshl_add_u32 v5, v5, 5, v6
v_mad_u32_u24 v5, v4, s89, v5
v_add_u32 v204, s88, v5
s_lshl_b32 s100, s44, 10
s_lshl_b32 s88, s47, 2
s_add_u32 s88, s88, s44
s_mul_i32 s88, s88, 3136
v_lshl_add_u32 v207, v1, 7, s88
s_movk_i32 s3, {2 * FR_ST}
s_mul_i32 s88, s46, 24
s_add_u32 s88, s88, s47
s_mul_i32 s89, s45, {FR_ST // 8}
s_add_u32 s88, s88, s89
s_sub_u32 s89, s2, 96
s_cmp_ge_u32 s47, 24
s_cselect_b32 s88, s89, s88
s_cselect_b32 s95, {FR_ST}, s3
s_cselect_b32 s3, -1, 0xffff
s_lshl_b32 s94, s88, 3
s_add_u32 s94, s94, {FL_WS}""")
def fill(A, c):
    out = []
    for q in (range(8) if c == 3 else range(7, 15)):
        out.append((lambda q=q: A(f"s_add_u32 m0, s100, {WA + q*4096 if c == 3 else (q-7)*4096}\ns_mov_b32 s89, {q*4*7168}"),
                    lambda: A.vmem("buffer_load_dwordx4 v204, s[96:99], s89 offen lds", "wo"), "wo"))
    if c == 2: return [(lambda: A("s_mov_b64 exec, 0x1ffffff"), lambda: (A.vmem("buffer_load_dword v206, v207, s[96:99], 0 offen", "t"), A("s_mov_b64 exec, -1")), "t")]
    if c == 3: out.insert(0, (lambda: None, lambda: A.vmem("buffer_load_dword v205, off, s[24:27], 0 sc1", "nonce"), "nonce"))
    return out
def poll(A, lab, msk):
    A(f"""s_mov_b32 s74, 0x40000
{lab}:
s_sub_u32 s74, s74, 1
s_cbranch_scc1 {lab}_x
buffer_load_dwordx4 v[4:7], v8, s[40:43], 0 offen sc1
buffer_load_dwordx4 v[12:15], v8, s[40:43], 0 offen offset:16 sc1
s_waitcnt vmcnt(0)
v_cmp_ne_u32 s[62:63], s101, v4
v_cmp_ne_u32 s[64:65], s101, v6
v_cmp_ne_u32 s[66:67], s101, v12
v_cmp_ne_u32 s[68:69], s101, v14
s_or_b64 s[62:63], s[62:63], s[64:65]
s_or_b64 s[66:67], s[66:67], s[68:69]
s_or_b64 s[62:63], s[62:63], s[66:67]
s_and_b64 s[64:65], s[62:63], {msk}
s_cbranch_scc1 {lab}
{lab}_x:""")
def fused_body(opt):
    opt = dict(opt); opt.update(_pre=pre, _fill=fill, _fused=1); opt.setdefault("st", "sc1")
    ld = opt.get("ld", "sc1")
    A = Asm()
    A("s_cmp_ge_u32 s2, 256\ns_cbranch_scc1 L_end")
    stamp(A, opt, 0)
    load_ptrs(A)
    A("s_memrealtime s[92:93]")
    A("v_lshrrev_b32 v2, 6, v0\nv_and_b32 v1, 63, v0\ns_and_b32 s45, s2, 1\nv_readfirstlane_b32 s44, v2\ns_bfe_u32 s46, s2, 0x20001\ns_lshr_b32 s47, s2, 3\ns_waitcnt lgkmcnt(0)")
    srd(A, 40, 26, WS_BYTES)
    A("s_movk_i32 s26, 256\ns_mov_b32 s27, 0x20000")
    A("s_or_b32 s88, s2, s44\ns_cbranch_scc1 L_nopub\ns_or_b32 s92, s92, 1\nv_mov_b32 v3, s92\ns_mov_b64 exec, 1\nbuffer_store_dword v3, off, s[24:27], 0 sc1\ns_mov_b64 exec, -1\nL_nopub:")
    A("s_cmp_ge_u32 s47, 24\ns_cbranch_scc1 L_dft")
    qkv_role(A, opt)
    A("s_branch L_k1_fin\nL_dft:")
    A.vm = []; A.lg = []
    dft_role(A, opt)
    A("L_k1_fin:")
    A.vm = []; A.lg = []
    stamp(A, opt, 3)
    k2_setup(A, opt)
    A(f"""s_mul_i32 s61, s45, {FR_ST}
s_add_u32 s61, s61, {FL_WS}
v_lshl_add_u32 v8, v1, 5, s61
v_mov_b32 v10, s94
v_mad_u32_u24 v10, v1, s95, v10
v_lshrrev_b32 v4, 3, v1
v_and_b32 v5, 7, v1
v_lshrrev_b32 v6, 1, v4
v_xor_b32 v5, v5, v6
v_lshlrev_b32 v5, 4, v5
v_lshl_add_u32 v5, v4, 10, v5
s_lshl_b32 s61, s45, 16
s_lshl_b32 s62, s44, 14
s_add_u32 s61, s61, s62
v_add_u32 v17, s61, v5
v_xor_b32 v21, 64, v17
v_add_u32 v21, 8192, v21
s_add_u32 s56, s62, {OB}
v_lshrrev_b32 v4, 1, v3
v_xor_b32 v4, v4, v2
v_lshlrev_b32 v4, 4, v4
v_lshl_add_u32 v4, v3, 7, v4
v_add_u32 v9, s56, v4
v_xor_b32 v11, 64, v9
s_waitcnt vmcnt(3)
s_barrier
s_cmp_lt_u32 s2, 32
s_cbranch_scc1 L_nowo""")
    for i in range(4): A(f"v_add_u32 v{84+i}, {WA}, v{22+i}")
    rds = []
    for h in range(16):
        for ct in range(4):
            for j in range(2):
                x = ct ^ (2*(h&1))
                rds.append(f"ds_read_b64_tr_b16 {ar(16*h+4*ct+2*j,2)}, v{84+x if h < 8 else 22+x} offset:{(28*h+16*j - (0 if h < 8 else 224))*128}")
    C = Asm(); k2_coefs(C)
    for i in range(max(len(rds), len(C.L))):
        if i < len(rds): A(rds[i])
        if i < len(C.L): A(C.L[i])
    A("L_nowo:")
    A("""s_waitcnt vmcnt(0)
v_readfirstlane_b32 s101, v205
s_cmp_lg_u32 s101, 0
s_cbranch_scc1 L_have
s_mov_b32 s74, 0x40000
L_renonce:
s_sub_u32 s74, s74, 1
s_cbranch_scc1 L_have
buffer_load_dword v205, off, s[24:27], 0 sc1
s_waitcnt vmcnt(0)
v_readfirstlane_b32 s101, v205
s_cmp_eq_u32 s101, 0
s_cbranch_scc1 L_renonce
L_have:
s_waitcnt lgkmcnt(0)
s_barrier
s_cmp_lg_u32 s44, 1
s_cbranch_scc1 L_noflag
v_mov_b32 v4, s101
s_mov_b32 exec_hi, 0
s_mov_b32 exec_lo, s3
buffer_store_dword v4, v10, s[40:43], 0 offen sc1
s_mov_b64 exec, -1
L_noflag:""")
    stamp(A, opt, 4)
    A("s_cmp_lt_u32 s2, 32\ns_cbranch_scc1 L_fin\ns_cmp_lg_u32 s44, 0\ns_cbranch_scc1 L_go\ns_mov_b32 exec_hi, 0xff")
    poll(A, "L_pa", "exec")
    A("s_mov_b64 exec, -1\nL_go:\ns_barrier")
    stamp(A, opt, 5)
    for f in k2_y(A, ld): f()
    A.vmem(f"buffer_load_dword v27, v18, s[40:43], 0 offen {ld}", "g")
    for hp in range(8):
        for hf in range(2):
            A(f"s_add_u32 m0, s56, {hp*2048 + hf*1024 - hp*128}\ns_nop 0")
            A.vmem(f"buffer_load_dwordx4 v{17+4*hf}, s[40:43], 0 offen offset:{hp*128} {ld} lds", ("o", hp))
        if hp == int(opt.get("yb", 7)): A.wait_vm("y"); A("s_barrier")
    for f in k2_rd_y(A, 0): f()
    for ks in range(4):
        interleave(A, k2_mf_y(A, ks), k2_rd_y(A, ks+1) if ks < 3 else [], every=2)
    def rd(hp):
        def f(hd):
            if hd == 0: A.wait_vm(("o", hp))
            A.ds(f"ds_read_b128 {vr(OF+8*hp+4*hd,4)}, v{9+2*hd} offset:{hp*2048}", ("of", 2*hp+hd))
        return [lambda: f(0), lambda: f(1)]
    def mf(h):
        def g(ct):
            if ct == 0: A.wait_lg(("of", h))
            d = vr(AB+4*ct, 4)
            A(f"v_mfma_f32_16x16x32_bf16 {d}, {ar(16*h+4*ct,4)}, {vr(OF+4*h,4)}, {'0' if h == 0 else d}")
        return [lambda ct=ct: g(ct) for ct in range(4)]
    for f in rd(0): f()
    for hp in range(8):
        interleave(A, mf(2*hp) + mf(2*hp+1), rd(hp+1) if hp < 7 else [], every=2, start=1)
        if hp == 0: stamp(A, opt, 6)
    k2_final(A)
    A("L_fin:")
    return A
```

```python
from asmlib import *
O_WS, Y_WS, G_WS, T_WS = 0, 2 << 20, 4 << 20, 5 << 20
WS_BYTES = 6 << 20
XB, WB, HB = 2048 * 896, 448 * 2688, 448 * 896

def load_ptrs(A):
    A("s_load_dwordx16 s[4:19], s[0:1], 0\ns_load_dwordx8 s[20:27], s[0:1], 64")

def stamp(A, opt, slot):
    if not opt.get("stamp"): return
    A(f"s_memrealtime s[{80+2*slot}:{81+2*slot}]")

def stamp_store(A, opt, base, nst):
    if not opt.get("stamp"): return
    A("s_waitcnt lgkmcnt(0)")
    A(f"s_lshl_b32 s3, s2, 2\ns_add_u32 s3, s3, s44\ns_lshl_b32 s3, s3, 5\ns_add_u32 s3, s3, {T_WS + base}")
    for i in range(nst):
        A(f"v_mov_b32 v1, s{80+2*i}\nv_mov_b32 v2, s3\nbuffer_store_dword v1, v2, s[40:43], 0 offen offset:{4*i}")

def interleave(A, main, fill, every=1, start=0):
    fill = list(fill); n = len(main)
    for i, m in enumerate(main):
        m()
        if i >= start:
            left = n - i
            k = -(-len(fill) // left) if every == 0 else every
            for _ in range(min(k, len(fill))): fill.pop(0)()
    for f in fill: f()

def main_loop(A, opt, dma, reads, mf, late=False):
    P, G = int(opt.get("P", 3)), int(opt.get("G", 4))
    fifo = [(c - 4, x) for c in range(P, 7) for x in dma(c)]
    extra = [(c, x) for c in (3, 4) for x in opt["_fill"](A, c)] if opt.get("_fill") else []
    nl = int(opt.get("wl", 16)) if late or opt.get("dl") else 0
    if opt.get("to"):
        pos = int(opt["to"]) * len(dma(0)); fifo.insert(pos, (-1, opt["_fill"](A, 2)[0]))
    fifo += extra[:len(extra) - nl]
    A.wait_vm(("d", 0)); A("s_barrier")
    stamp(A, opt, 1)
    for f in reads(0): f()
    free = -1; last = -G; i = 0
    for n in range(14):
        m = mf(n); c = n // 2
        rd = reads(n+1) if n < 13 and not n & 1 else []
        for j, g in enumerate(m):
            if n & 1 and n < 13 and j == 6:
                assert all(t != ("d", c+1) for _, (_, _, t) in fifo), (n, "chunk not issued")
                A.wait_lg0(); A.wait_vm(("d", c+1)); A("s_barrier"); free = c
                rd = reads(n+1)
            go = fifo and fifo[0][0] <= free and i - last >= G
            tt = go and fifo[0][1][2] == "t"
            if go and not tt: fifo[0][1][0]()
            g()
            if tt: fifo[0][1][0]()
            if go: fifo.pop(0)[1][1](); last = i
            k = 0 if go else (2 if len(rd) > len(m) - j - 3 else 1)
            for _ in range(min(k, len(rd))): rd.pop(0)()
            i += 1
        for f in rd: f()
    for _, x in fifo: x[0](); A("s_nop 0"); x[1]()
    stamp(A, opt, 2)
    return [x for _, x in extra[len(extra) - nl:]]

def spread(A, i0, items, step):
    old = A.L[i0:]; del A.L[i0:]; masked = False; k = 0
    for j, l in enumerate(old):
        if masked is False and items and j >= k and not l.startswith("s_mov_b32 exec"):
            p, ld, _ = items.pop(0); p(); A(l); ld(); k = j + step
        else: A(l)
        if l.startswith("s_mov_b32 exec_lo"): masked = True
        if l.startswith("s_mov_b64 exec, -1"): masked = False
    assert not items

def warm(A, opt, dft):
    t = opt.get("tch", "")
    A("s_lshl_b32 s59, s47, 2\ns_add_u32 s59, s59, s44")
    if "W" in t:
        srd(A, 64, 16, WB)
        A("""v_and_b32 v2, 15, v1
v_lshrrev_b32 v3, 4, v1
v_lshl_add_u32 v3, v3, 7, s59
v_mul_u32_u24 v4, 11, v2
v_lshrrev_b32 v4, 5, v4
s_movk_i32 s60, 2688
s_mul_i32 s61, s46, 224
v_mul_u32_u24 v3, s60, v3
v_mul_u32_u24 v2, 108, v2
v_mul_u32_u24 v4, 572, v4
s_mov_b32 exec_lo, 0x1ff01ff
v_add3_u32 v3, v3, v2, v4
s_mov_b32 exec_hi, 0x1ff01ff""")
        A.vmem("buffer_load_dword v206, v3, s[64:67], s61 offen", "t")
        A("s_mov_b64 exec, -1")
    if "X" in t:
        A("""s_lshl_b32 s60, s59, 4
s_add_u32 s60, s60, s45
s_mul_i32 s60, s60, 896
v_lshrrev_b32 v2, 3, v1
v_and_b32 v3, 7, v1
v_mul_u32_u24 v2, 1792, v2
s_mov_b32 exec_lo, XM
v_lshl_add_u32 v2, v3, 7, v2
s_mov_b32 exec_hi, XM""".replace("XM", hex(0x01010101 * int(opt.get("xm", "0x7f"), 16))))
        A.vmem("buffer_load_dword v206, v2, s[28:31], s60 offen", "t")
        A("s_mov_b64 exec, -1")
    if "H" in t and dft:
        A("""s_sub_u32 s59, s59, 96
s_lshl_b32 s60, s46, 6
s_lshl_b32 s59, s59, 1
s_add_u32 s60, s60, s59
s_mul_i32 s60, s60, 896
v_lshlrev_b32 v2, 7, v1
s_mov_b64 exec, 0x3fff""")
        srd(A, 64, 10, HB)
        A.vmem("buffer_load_dword v206, v2, s[64:67], s60 offen", "t")
        A.vmem("buffer_load_dword v206, v2, s[36:39], s60 offen", "t")
        A("s_mov_b64 exec, -1")

def prologue(A, opt, dma, dft=False):
    for c in range(int(opt.get("P", 3)) + 1):
        if c == int(opt.get("tp", 1)): warm(A, opt, dft)
        if c == int(opt.get("P", 3)): break
        for pre, ld, _ in dma(c):
            n0 = len(A.L); pre()
            if len(A.L) - n0 < 2: A("s_nop 0")
            ld()
    if opt.get("_pre"): opt["_pre"](A)

def band_masks():
    ma, mb, mb0 = [], [], []
    for r in range(4):
        a = b = b0 = 0
        for lane in range(64):
            l, kg = lane & 15, lane >> 4
            kp = 4 * kg + r
            if kp >= l + 9: a |= 1 << lane
            if 0 <= l - kp <= 7:
                b |= 1 << lane
                if kp >= 7: b0 |= 1 << lane
        ma.append(a); mb.append(b); mb0.append(b0)
    return ma, mb, mb0

def qkv_role(A, opt):
    st = opt.get("st", "")
    SL = 36864
    srd(A, 28, 4, XB); srd(A, 32, 16, WB)
    A("""
s_and_b32 s48, s47, 1
s_lshl_b32 s49, s46, 1
s_add_u32 s48, s48, s49
s_lshr_b32 s49, s47, 1
s_lshr_b32 s50, s44, 1
s_and_b32 s51, s44, 1
v_lshrrev_b32 v2, 3, v1
v_and_b32 v3, 7, v1
v_lshrrev_b32 v4, 1, v2
v_lshlrev_b32 v5, 1, v4
v_xor_b32 v5, v3, v5
v_lshrrev_b32 v6, 2, v2
v_and_b32 v7, 3, v2
v_lshl_add_u32 v6, v6, 3, v7
s_lshl_b32 s52, s50, 5
s_lshl_b32 s53, s51, 2
s_add_u32 s52, s52, s53
v_add_u32 v6, s52, v6
s_movk_i32 s53, 2688
s_mul_i32 s54, s48, 112
v_mul_u32_u24 v6, s53, v6
v_lshl_add_u32 v6, v5, 4, v6
v_add_u32 v6, s54, v6
v_cmp_eq_u32 vcc, 7, v5
v_bfrev_b32 v7, 1
s_mul_i32 s55, s50, 12288
v_cndmask_b32 v32, v6, v7, vcc
s_lshl_b32 s56, s51, 11
s_add_u32 s55, s55, s56
s_mul_i32 s56, s44, 3072
s_add_u32 s56, s56, 24576
s_mul_i32 s57, s49, 86
s_mul_i32 s58, s44, 24
s_add_u32 s57, s57, s58
s_sub_u32 s57, s57, 7
s_lshl_b32 s57, s57, 1
s_add_u32 s57, s57, s45
s_mul_i32 s57, s57, 896
s_movk_i32 s58, 1792
v_mul_u32_u24 v8, s58, v2
v_add_u32 v8, s57, v8
v_xor_b32 v9, v3, v4
s_lshl_b32 s59, s51, 2
v_xor_b32 v9, s59, v9
v_xor_b32 v10, 4, v9
v_lshl_add_u32 v33, v9, 4, v8
v_lshl_add_u32 v34, v10, 4, v8
v_add_u32 v34, 14336, v34
v_add_u32 v35, 28672, v33""")
    def dma(c):
        slot = c % 4; out = []
        for kp in range(2):
            for sec in range(3):
                def pre(kp=kp, sec=sec):
                    A(f"s_add_u32 m0, s55, {slot*SL + sec*4096 + kp*1024 - sec*896}")
                    if sec == 0: A(f"s_mov_b32 s60, {c*172032 + kp*43008}")
                out.append((pre, lambda sec=sec: A.vmem(f"buffer_load_dwordx4 v32, s[32:35], s60 offen offset:{sec*896} {opt.get('pw','')} lds", ("d", c)), ("d", c)))
        for i in range(3):
            out.append((lambda i=i: A(f"s_add_u32 m0, s56, {slot*SL + i*1024 - c*128}"),
                        lambda i=i: A.vmem(f"buffer_load_dwordx4 v{33+i}, s[28:31], 0 offen offset:{c*128} {opt.get('px','')} lds", ("d", c)), ("d", c)))
        return out
    prologue(A, opt, dma)
    A(f"""
v_lshrrev_b32 v2, 4, v1
v_bfe_u32 v3, v1, 2, 2
v_and_b32 v4, 3, v1
v_and_b32 v5, 1, v2
v_lshl_add_u32 v5, v5, 2, v3
v_lshrrev_b32 v6, 1, v2
v_lshlrev_b32 v6, 10, v6
v_lshl_add_u32 v6, v5, 7, v6
v_and_b32 v7, 6, v5
s_mul_i32 s61, s51, 56
v_lshl_add_u32 v8, v4, 3, s61
v_add_u32 v9, 32, v8
v_lshrrev_b32 v10, 4, v8
v_xor_b32 v10, v10, v7
v_and_b32 v8, 8, v8
v_lshl_add_u32 v10, v10, 4, v8
v_add_u32 v16, v6, v10
v_lshrrev_b32 v10, 4, v9
v_xor_b32 v10, v10, v7
v_lshl_add_u32 v10, v10, 4, v8
v_add_u32 v17, v6, v10
v_and_b32 v3, 15, v1
v_lshrrev_b32 v4, 1, v3
v_xor_b32 v4, v4, v2
s_mul_i32 s61, s50, 6144
s_add_u32 s61, s61, 24576
v_lshlrev_b32 v5, 7, v3
v_add_u32 v5, s61, v5
v_lshl_add_u32 v18, v4, 4, v5
v_xor_b32 v19, 64, v18""")
    for s in range(1, 4):
        for i in range(4): A(f"v_add_u32 v{16+4*s+i}, {s*SL}, v{16+i}")
    A(f"""
s_mul_i32 s61, s44, 3072
s_add_u32 s61, s61, 36864
v_lshrrev_b32 v4, 2, v3
v_xor_b32 v4, v4, v2
v_lshlrev_b32 v4, 4, v4
v_lshl_add_u32 v4, v3, 6, v4
v_add_u32 v14, s61, v4
v_xor_b32 v4, v1, v2
v_lshl_add_u32 v15, v4, 4, s61
v_lshrrev_b32 v3, 2, v1
s_mul_i32 s61, s50, 48
v_add_u32 v4, s61, v3
s_mul_i32 s62, s49, 86
s_sub_u32 s62, s62, 7
v_add_u32 v5, s62, v4
v_and_b32 v6, 15, v5
v_lshl_add_u32 v6, v6, 1, s45
v_ashrrev_i32 v7, 4, v5
v_lshl_add_u32 v6, v6, 6, v7
s_lshl_b32 s63, s48, 1
s_add_u32 s63, s63, s51
v_lshl_add_u32 v6, v6, 4, s63
v_and_b32 v7, 3, v1
v_lshl_add_u32 v6, v6, 2, v7
v_lshlrev_b32 v6, 4, v6
v_bfrev_b32 v7, 1
s_sub_u32 s63, 1031, s62
s_sub_u32 s63, s63, 14
s_min_u32 s63, s63, 86""")
    for T in range(3):
        A(f"v_add_u32 v8, {16*T-7}, v4\nv_cmp_gt_u32 vcc, s63, v8\nv_add_u32 v9, {1024*T}, v6\ns_nop 0\nv_cndmask_b32 v{11+T}, v7, v9, vcc")
    ma, mb, mb0 = band_masks()
    A("s_or_b32 s61, s49, s50\ns_cmp_eq_u32 s61, 0")
    for r in range(4):
        for hi in range(2):
            x, y = (mb0[r] >> (32*hi)) & 0xffffffff, (mb[r] >> (32*hi)) & 0xffffffff
            A(f"s_mov_b32 s{72+2*r+hi}, {y:#x}")
            if x != y: A(f"s_cselect_b32 s{72+2*r+hi}, {x:#x}, s{72+2*r+hi}")
    FS = [36, 72]
    def reads(n):
        c, ksl = divmod(n, 2); b = 16 + 4 * (c % 4); f = FS[n & 1]; out = []
        for t in range(3):
            out.append(lambda t=t: A.ds(f"ds_read_b128 {vr(f+4*t,4)}, v{b+2+ksl} offset:{t*2048}", ("x", n)))
        for sec in range(3):
            for ft in range(2):
                for j in range(2):
                    out.append(lambda sec=sec, ft=ft, j=j: A.ds(
                        f"ds_read_b64_tr_b16 {vr(f+12+(sec*2+ft)*4+2*j,2)}, v{b+ft} offset:{((ksl*3+sec)*2+j)*2048}", ("w", n, sec, ft)))
        return out
    def mf(n):
        f = FS[n & 1]; out = []
        for sec in range(3):
            for ft in range(2):
                for t in range(3):
                    def g(sec=sec, ft=ft, t=t):
                        if t == 0 and ft == 0: A.wait_lg(("x", n), ("w", n, sec, 0), ("w", n, sec, 1))
                        d = 108 + sec*24 + (t*2+ft)*4; wv = f+12+(sec*2+ft)*4; xv = f+4*t
                        A(mfma(d, wv, xv, "0" if n == 0 else None) if sec < 2 else mfma(d, xv, wv, "0" if n == 0 else None))
                    out.append(g)
        return out
    late = main_loop(A, opt, dma, reads, mf, True); i0 = len(A.L)
    Q = lambda t: 36 + 4*t
    K = lambda T: 48 + 4*(T+1)
    V = lambda ft, T: 64 + 8*ft + 2*(T+1)
    S = lambda T: 84 + 8*T
    acc = lambda sec, t, ft: 108 + sec*24 + (t*2+ft)*4
    def pk(d, s): A(f"v_cvt_pk_bf16_f32 v{d}, v{s}, v{s+1}\nv_cvt_pk_bf16_f32 v{d+1}, v{s+2}, v{s+3}")
    for r in range(4):
        for hi in range(2):
            A(f"s_mov_b32 s{56+2*r+hi}, {(ma[r] >> (32*hi)) & 0xffffffff:#x}\ns_mov_b32 s{64+2*r+hi}, {(mb[r] >> (32*hi)) & 0xffffffff:#x}")
    for ft in range(2): pk(K(2)+2*ft, acc(1, 2, ft))
    A("v_lshlrev_b32 v2, 4, v1\ns_lshl_b32 s52, s44, 11\ns_add_u32 s52, s52, 147456\nv_add_u32 v3, s52, v2\ns_lshl_b32 s52, s51, 11\ns_add_u32 s52, s52, 147456\nv_add_u32 v4, s52, v2")
    for ft in range(2): pk(V(ft, 2), acc(2, 2, ft))
    A.ds(f"ds_write_b128 v3, {vr(K(2),4)}", "hw")
    A.ds(f"ds_write_b64 v3, {vr(V(0,2),2)} offset:1024", "hw")
    A.ds(f"ds_write_b64 v3, {vr(V(1,2),2)} offset:1032", "hw")
    for t in range(3):
        for ft in range(2): pk(Q(t)+2*ft, acc(0, t, ft))
    for t in range(2):
        for ft in range(2): pk(K(t)+2*ft, acc(1, t, ft)); pk(V(ft, t), acc(2, t, ft))
    A("s_mov_b32 exec_lo, 0\ns_mov_b32 exec_hi, 0xffff0000")
    for t in range(3): A(f"v_mov_b32 v{Q(t)+2}, 0\nv_mov_b32 v{Q(t)+3}, 0")
    A("s_mov_b64 exec, -1")
    for i in range(4): A(f"v_mov_b32 v{80+i}, 0x3f803f80")
    A("v_mov_b32 v10, 0xf149f2ca")
    A.wait_lg0(); A("s_barrier")
    A.ds(f"ds_read_b128 {vr(K(-1),4)}, v4", "hk")
    A.ds(f"ds_read_b64 {vr(V(0,-1),2)}, v4 offset:1024", "hv")
    A.ds(f"ds_read_b64 {vr(V(1,-1),2)}, v4 offset:1032", "hv")
    for T in (2, 1):
        A(mfma(S(T), K(T-1), Q(T), "0")); A(mfma(S(T)+4, K(T), Q(T), "0"))
    A(mfma(S(0)+4, K(0), Q(0), "0"))
    A.wait_lg("hk"); A(mfma(S(0), K(-1), Q(0), "0"))
    A("s_mov_b32 s52, 0x3e8b97f6\ns_nop 2")
    U = (2, 1, 0)
    for T in U:
        if T == 0: A("s_nop 0")
        for i in range(8):
            mk = 56 + 2*i if i < 4 else ((72 if T == 0 else 64) + 2*(i-4))
            A(f"v_cndmask_b32 v{S(T)+i}, v10, v{S(T)+i}, s[{mk}:{mk+1}]")
    M = lambda T: 156 + T
    TT = lambda T: 160 + T
    for T in U: A(f"v_max3_f32 v{M(T)}, v{S(T)}, v{S(T)+1}, v{S(T)+2}")
    for T in U: A(f"v_max3_f32 v{M(T)}, v{M(T)}, v{S(T)+3}, v{S(T)+4}")
    for T in U: A(f"v_max3_f32 v{M(T)}, v{M(T)}, v{S(T)+5}, v{S(T)+6}")
    for T in U: A(f"v_max_f32 v{M(T)}, v{M(T)}, v{S(T)+7}")
    for sw in (16, 32):
        for T in U: A(f"v_mov_b32 v{TT(T)}, v{M(T)}")
        for T in U: A(f"v_permlane{sw}_swap_b32 v{M(T)}, v{TT(T)}")
        for T in U: A(f"v_max_f32 v{M(T)}, v{M(T)}, v{TT(T)}")
    for T in U: A(f"v_mul_f32 v{M(T)}, s52, v{M(T)}")
    P = lambda T: 108 + 4*T
    O = lambda T: 120 + 12*T
    A.wait_lg0()
    for T in U:
        for i in range(8): A(f"v_fma_f32 v{S(T)+i}, v{S(T)+i}, s52, -v{M(T)}")
        for i in range(8): A(f"v_exp_f32 v{S(T)+i}, v{S(T)+i}")
        for i in range(4): A(f"v_cvt_pk_bf16_f32 v{P(T)+i}, v{S(T)+2*i}, v{S(T)+2*i+1}")
        A("s_nop 1")
        A(mfma(O(T)+8, 80, P(T), "0")); A(mfma(O(T), V(0, T-1), P(T), "0")); A(mfma(O(T)+4, V(1, T-1), P(T), "0"))
    spread(A, i0, late, int(opt.get("ws", 14)))
    A("s_mov_b32 s52, -1\ns_mov_b32 s53, 0xffff")
    for T in U:
        if T == 0: A("s_nop 1")
        A(f"v_rcp_f32 v{O(T)+8}, v{O(T)+8}\ns_nop 0")
        for i in range(8): A(f"v_mul_f32 v{O(T)+i}, v{O(T)+i}, v{O(T)+8}")
        d = 164 + 4*T
        for i in range(4): A(f"v_cvt_pk_bf16_f32 v{d+i}, v{O(T)+2*i}, v{O(T)+2*i+1}")
        A(f"v_cndmask_b32 v{d+2}, 0, v{d+2}, s[52:53]\nv_cndmask_b32 v{d+3}, 0, v{d+3}, s[52:53]")
        A.ds(f"ds_write_b128 v14, {vr(d,4)} offset:{1024*T}", ("tw", T))
        A.ds(f"ds_read_b128 {vr(180+4*T,4)}, v15 offset:{1024*T}", ("tr", T))
        for X in ([T+1] if T < 2 else []) + ([0] if T == 0 else []):
            A.wait_lg(("tr", X))
            A.vmem(f"buffer_store_dwordx4 {vr(180+4*X,4)}, v{11+X}, s[40:43], 0 offen {st}", "st")

def dft_role(A, opt):
    st = opt.get("st", "")
    SL = 32768
    srd(A, 28, 4, XB); srd(A, 32, 10, HB); srd(A, 36, 12, HB)
    A(f"""
s_sub_u32 s48, s47, 24
s_lshl_b32 s49, s48, 3
s_add_u32 s49, s49, s45
s_lshl_b32 s50, s46, 2
s_add_u32 s50, s50, s44
s_lshl_b32 s51, s50, 4
s_cmp_eq_u32 s50, 15
s_cselect_b32 s32, s20, s32
s_cselect_b32 s33, s21, s33
s_cselect_b32 s34, 896, s34
s_cselect_b32 s52, 0, s51
v_lshrrev_b32 v2, 3, v1
v_and_b32 v3, 7, v1
v_lshrrev_b32 v4, 1, v2
v_xor_b32 v4, v3, v4
v_lshlrev_b32 v4, 4, v4
s_lshl_b32 s53, s44, 1
s_add_u32 s53, s53, s49
s_mul_i32 s53, s53, 896
s_mov_b32 s54, 57344
v_mad_u32_u24 v5, v2, s54, v4
v_add_u32 v32, s53, v5
v_xor_b32 v33, 64, v32
v_add_u32 v33, {8*57344}, v33
s_movk_i32 s54, 896
v_mad_u32_u24 v5, v2, s54, v4
s_mul_i32 s55, s52, 896
v_add_u32 v34, s55, v5
v_xor_b32 v35, 64, v34
v_add_u32 v35, 7168, v35
s_lshl_b32 s56, s44, 12
s_add_u32 s56, s56, 1024
s_lshl_b32 s57, s44, 11
s_add_u32 s57, s57, 17408
s_mov_b32 s58, 917504""")
    def dma(c):
        slot = c % 4; out = []
        for cs in range(2):
            for hf in range(2):
                out.append((lambda cs=cs, hf=hf: A(f"s_add_u32 m0, s57, {slot*SL + cs*8192 + hf*1024 - c*128}"),
                            lambda cs=cs, hf=hf: A.vmem(f"buffer_load_dwordx4 v{34+hf}, s[{32+4*cs}:{35+4*cs}], 0 offen offset:{c*128} lds", ("d", c)), ("d", c)))
        for ts in range(2):
            for hf in range(2):
                out.append((lambda ts=ts, hf=hf: A(f"s_add_u32 m0, s56, {slot*SL + ts*2048 + hf*1024 - c*128}"),
                            lambda ts=ts, hf=hf: A.vmem(f"buffer_load_dwordx4 v{32+hf}, s[28:31], {'s58' if ts else '0'} offen offset:{c*128} lds", ("d", c)), ("d", c)))
        return out
    prologue(A, opt, dma, True)
    tch = opt.get("tch", "")
    if "w" in tch:
        r0 = 64 * int(opt.get("P", 3)); nr = (448 - r0) // 32
        srd(A, 64, 16, WB)
        A(f"""s_lshl_b32 s59, s48, 2
s_add_u32 s59, s59, s44
s_add_u32 s59, s59, {r0}
v_and_b32 v2, 15, v1
v_lshrrev_b32 v3, 4, v1
v_lshl_add_u32 v4, v2, 5, s59
s_movk_i32 s59, 2688
s_mul_i32 s60, s46, 224
v_mul_u32_u24 v4, s59, v4
s_movk_i32 s59, 896
v_mad_u32_u24 v4, v3, s59, v4
v_add_u32 v4, s60, v4
v_cmp_gt_u32 vcc, {nr}, v2
v_cmp_gt_u32 s[60:61], 3, v3
v_bfrev_b32 v5, 1
s_and_b64 vcc, vcc, s[60:61]
v_cndmask_b32 v4, v5, v4, vcc""")
        for o in (0, 112, 220): A.vmem(f"buffer_load_dword v206, v4, s[64:67], 0 offen offset:{o}", "t")
    if "x" in tch:
        A(f"v_and_b32 v2, 31, v1\nv_lshrrev_b32 v3, 5, v1\ns_mov_b32 s59, 57344\nv_lshlrev_b32 v3, 7, v3\nv_mad_u32_u24 v4, v2, s59, v3\nv_add_u32 v4, s53, v4")
        for c in range(int(opt.get("P", 3)), 7, 2): A.vmem(f"buffer_load_dword v206, v4, s[28:31], 0 offen offset:{min(c, 5)*128}", "t")
    A("""
v_lshrrev_b32 v2, 4, v1
v_and_b32 v3, 15, v1
v_lshrrev_b32 v4, 1, v3
v_xor_b32 v4, v4, v2
v_lshlrev_b32 v5, 7, v3
v_lshl_add_u32 v16, v4, 4, v5
v_xor_b32 v17, 64, v16
v_add_u32 v18, s57, v16
v_add_u32 v19, s57, v17
v_add_u32 v16, 1024, v16
v_add_u32 v17, 1024, v17""")
    for s in range(1, 4):
        for i in range(4): A(f"v_add_u32 v{16+4*s+i}, {s*SL}, v{16+i}")
    A("v_cvt_f32_u32 v4, v3\nv_mul_f32 v4, 0x3d000000, v4\nv_add_f32 v5, 0.5, v4\nv_lshlrev_b32 v6, 2, v2\nv_cvt_f32_u32 v6, v6")
    import struct
    fl = lambda x: hex(struct.unpack("<I", struct.pack("<f", x))[0])
    for i in range(8): A(f"v_add_f32 v{36+i}, {fl(16*(i>>2) + (i&3))}, v6")
    for kt in range(2):
        for i in range(8): A(f"v_mul_f32 v{44+i}, v{4+kt}, v{36+i}")
        for i in range(8): A(f"v_fract_f32 v{44+i}, v{44+i}")
        for i in range(8): A(f"v_cos_f32 v{52+i}, v{44+i}")
        for i in range(8): A(f"v_sin_f32 v{60+i}, v{44+i}")
        for i in range(4): A(f"v_cvt_pk_bf16_f32 v{180+4*kt+i}, v{52+2*i}, v{53+2*i}")
        for i in range(4): A(f"v_cvt_pk_bf16_f32 v{188+4*kt+i}, v{60+2*i}, v{61+2*i}")
        for i in range(4): A(f"v_xor_b32 v{196+4*kt+i}, 0x80008000, v{188+4*kt+i}")
    A(f"""
s_lshl_b32 s59, s48, 1
s_add_u32 s59, s59, s45
s_lshl_b32 s59, s59, 12
s_lshl_b32 s60, s51, 4
s_add_u32 s59, s59, s60
s_add_u32 s59, s59, {Y_WS}
v_lshlrev_b32 v11, 18, v2
v_lshl_add_u32 v11, v3, 4, v11
v_add_u32 v11, s59, v11
s_lshl_b32 s59, s49, 7
s_add_u32 s59, s59, {G_WS}
v_lshl_add_u32 v12, v2, 4, s59
v_cmp_eq_u32 vcc, 0, v3
v_bfrev_b32 v7, 1
s_nop 0
v_cndmask_b32 v12, v7, v12, vcc""")
    FS = [36, 76]
    def reads(n):
        c, ksl = divmod(n, 2); b = 16 + 4 * (c % 4); f = FS[n & 1]; out = []
        for cs in range(2):
            out.append(lambda cs=cs: A.ds(f"ds_read_b128 {vr(f+32+4*cs,4)}, v{b+2+ksl} offset:{cs*8192}", ("w", n)))
        for rt in range(8):
            out.append(lambda rt=rt: A.ds(f"ds_read_b128 {vr(f+4*rt,4)}, v{b+ksl} offset:{rt*2048}", ("x", n, rt)))
        return out
    def mf(n):
        f = FS[n & 1]; out = []
        for rt in range(8):
            for cs in range(2):
                def g(rt=rt, cs=cs):
                    if cs == 0 and rt % 2 == 0: A.wait_lg(("w", n), ("x", n, rt), ("x", n, rt+1))
                    A(mfma(116 + 32*cs + 4*rt, f+4*rt, f+32+4*cs, "0" if n == 0 else None))
                out.append(g)
        return out
    for p, ld, _ in main_loop(A, opt, dma, reads, mf): p(); ld()
    A("s_cmp_eq_u32 s50, 15\ns_cbranch_scc1 L_gate\ns_nop 5")
    for u in range(4):
        for cs in range(2):
            for ts in range(2):
                s = 116 + 32*cs + 4*(2*u+ts); d = 36 + 16*cs + 4*u + 2*ts
                A(f"v_cvt_pk_bf16_f32 v{d}, v{s}, v{s+1}\nv_cvt_pk_bf16_f32 v{d+1}, v{s+2}, v{s+3}")
    A("s_nop 1")
    YR = lambda u, kt: 116 + (u*2+kt)*4
    for kt in range(2):
        for u in range(4):
            A(mfma(YR(u, kt), 180+4*kt, 36+4*u, "0")); A(mfma(YR(u, kt)+32, 196+4*kt, 36+4*u, "0"))
        for u in range(4):
            A(mfma(YR(u, kt), 188+4*kt, 52+4*u)); A(mfma(YR(u, kt)+32, 180+4*kt, 52+4*u))
    for kt in range(2):
        if kt == 1: A("s_nop 0")
        for r in range(4):
            d = 68 + 4*(kt*4+r)
            for ri in range(2):
                for up in range(2):
                    A(f"v_cvt_pk_bf16_f32 v{d+2*ri+up}, v{YR(2*up,kt)+32*ri+r}, v{YR(2*up+1,kt)+32*ri+r}")
            A(f"s_mov_b32 s60, {(16*kt+r)*65536}")
            A.vmem(f"buffer_store_dwordx4 {vr(d,4)}, v11, s[40:43], s60 offen {st}", "st")
    A("s_branch L_k1_fin\nL_gate:\ns_nop 7")
    for rt in range(8):
        A(f"buffer_store_dwordx4 {vr(116+4*rt,4)}, v12, s[40:43], 0 offen offset:{(rt>>1)*256 + (rt&1)*64} {st}")

def k1_body(opt):
    A = Asm()
    A("s_cmp_ge_u32 s2, 256\ns_cbranch_scc1 L_k1_end")
    stamp(A, opt, 0)
    load_ptrs(A)
    A("v_lshrrev_b32 v2, 6, v0\nv_and_b32 v1, 63, v0\ns_and_b32 s45, s2, 1\nv_readfirstlane_b32 s44, v2\ns_bfe_u32 s46, s2, 0x20001\ns_lshr_b32 s47, s2, 3\ns_waitcnt lgkmcnt(0)")
    srd(A, 40, 26, WS_BYTES)
    A("s_cmp_ge_u32 s47, 24\ns_cbranch_scc1 L_dft")
    qkv_role(A, opt)
    A("s_branch L_k1_fin\nL_dft:")
    A.vm = []; A.lg = []
    dft_role(A, opt)
    A("L_k1_fin:")
    return A
```

```python
from asmlib import *
from gen_k1 import *
from gen_k2 import *
FL_WS = G_WS + 65536
FR_ST = 1280
WA = 110592
OB = 77824
def pre(A):
    A(f"""
s_mov_b32 s96, s18
s_mov_b32 s97, s19
s_cmp_lt_u32 s2, 32
s_cselect_b32 s98, 0, {HB}
s_mov_b32 s99, 0x20000
s_sub_u32 s88, s47, 4
s_mul_i32 s89, s88, 37
s_lshr_b32 s89, s89, 8
s_mul_i32 s89, s89, 7
s_sub_u32 s88, s88, s89
s_lshl_b32 s88, s88, 7
s_mul_i32 s89, s44, 7168
s_add_u32 s88, s88, s89
s_movk_i32 s89, 896
v_lshrrev_b32 v4, 3, v1
v_bfe_u32 v5, v1, 1, 2
v_lshrrev_b32 v6, 1, v4
v_xor_b32 v5, v5, v6
v_and_b32 v6, 1, v1
v_lshlrev_b32 v6, 4, v6
v_lshl_add_u32 v5, v5, 5, v6
v_mad_u32_u24 v5, v4, s89, v5
v_add_u32 v204, s88, v5
s_lshl_b32 s100, s44, 10
s_lshl_b32 s88, s47, 2
s_add_u32 s88, s88, s44
s_mul_i32 s88, s88, 3136
v_lshl_add_u32 v207, v1, 7, s88
s_movk_i32 s3, {2 * FR_ST}
s_mul_i32 s88, s46, 24
s_add_u32 s88, s88, s47
s_mul_i32 s89, s45, {FR_ST // 8}
s_add_u32 s88, s88, s89
s_sub_u32 s89, s2, 96
s_cmp_ge_u32 s47, 24
s_cselect_b32 s88, s89, s88
s_cselect_b32 s95, {FR_ST}, s3
s_cselect_b32 s3, -1, 0xffff
s_lshl_b32 s94, s88, 3
s_add_u32 s94, s94, {FL_WS}""")
def fill(A, c):
    out = []
    for q in (range(8) if c == 3 else range(7, 15)):
        out.append((lambda q=q: A(f"s_add_u32 m0, s100, {WA + q*4096 if c == 3 else (q-7)*4096}\ns_mov_b32 s89, {q*4*7168}"),
                    lambda: A.vmem("buffer_load_dwordx4 v204, s[96:99], s89 offen lds", "wo"), "wo"))
    if c == 2: return [(lambda: A("s_mov_b64 exec, 0x1ffffff"), lambda: (A.vmem("buffer_load_dword v206, v207, s[96:99], 0 offen", "t"), A("s_mov_b64 exec, -1")), "t")]
    if c == 3: out.insert(0, (lambda: None, lambda: A.vmem("buffer_load_dword v205, off, s[24:27], 0 sc1", "nonce"), "nonce"))
    return out
PL = "buffer_load_dwordx4 v[4:7], v8, s[40:43], 0 offen sc1\nbuffer_load_dwordx4 v[12:15], v8, s[40:43], 0 offen offset:16 sc1"
def poll(A, lab, msk, issued=False):
    A("s_mov_b32 s74, 0x40000" + (f"\ns_branch {lab}_w" if issued else ""))
    A(f"""{lab}:
s_sub_u32 s74, s74, 1
s_cbranch_scc1 {lab}_x
{PL}
{lab}_w:
s_waitcnt vmcnt(0)
v_cmp_ne_u32 s[62:63], s101, v4
v_cmp_ne_u32 s[64:65], s101, v6
v_cmp_ne_u32 s[66:67], s101, v12
v_cmp_ne_u32 s[68:69], s101, v14
s_or_b64 s[62:63], s[62:63], s[64:65]
s_or_b64 s[66:67], s[66:67], s[68:69]
s_or_b64 s[62:63], s[62:63], s[66:67]
s_and_b64 s[64:65], s[62:63], {msk}
s_cbranch_scc1 {lab}
{lab}_x:""")
import re
VM = {8: 240, 9: 241, 10: 242, 11: 243}; VM.update({16+i: 244+i for i in range(11)}); VM.update({28+i: 208+i for i in range(32)})
SM = {45+i: 4+i for i in range(15)}; SM.update({32+i: 20+i for i in range(4)})
def ren(l):
    if l.startswith("L_") or "cbranch" in l: return l
    def f(p, M):
        return lambda m: (f"{p}[{M.get(int(m[1]), int(m[1]))}:{M.get(int(m[2]), int(m[2]))}]" if m[1] else f"{p}{M.get(int(m[3]), int(m[3]))}")
    l = re.sub(r"\bv\[(\d+):(\d+)\]|\bv(\d+)\b", f("v", VM), l)
    return re.sub(r"\bs\[(\d+):(\d+)\]|\bs(\d+)\b", f("s", SM), l)
def p2_setup(A0, opt):
    pre(A0)
    A = Asm()
    k2_setup(A, opt)
    A(f"""s_mul_i32 s61, s45, {FR_ST}
s_add_u32 s61, s61, {FL_WS}
v_lshl_add_u32 v8, v1, 5, s61
v_mov_b32 v10, s94
v_mad_u32_u24 v10, v1, s95, v10
v_lshrrev_b32 v4, 3, v1
v_and_b32 v5, 7, v1
v_lshrrev_b32 v6, 1, v4
v_xor_b32 v5, v5, v6
v_lshlrev_b32 v5, 4, v5
v_lshl_add_u32 v5, v4, 10, v5
s_lshl_b32 s61, s45, 16
s_lshl_b32 s62, s44, 14
s_add_u32 s61, s61, s62
v_add_u32 v17, s61, v5
v_xor_b32 v21, 64, v17
v_add_u32 v21, 8192, v21
s_add_u32 s56, s62, {OB}
v_lshrrev_b32 v4, 1, v3
v_xor_b32 v4, v4, v2
v_lshlrev_b32 v4, 4, v4
v_lshl_add_u32 v4, v3, 7, v4
v_add_u32 v9, s56, v4
v_xor_b32 v11, 64, v9""")
    k2_coefs(A)
    for l in A.L: A0(ren(l))
def tlb(A0, opt):
    if opt.get("tl"):
        A0.vmem("buffer_load_dword v206, v247, s[20:23], 0 offen", "t")
        A0(f"s_mov_b32 s61, {Y_WS + 3840}"); A0.vmem("buffer_load_dword v206, off, s[40:43], s61", "t")
        A0(f"s_mov_b32 s61, {G_WS + 32768}"); A0.vmem("buffer_load_dword v206, off, s[40:43], s61", "t")
def fused_body(opt):
    opt = dict(opt); opt.update(_pre=lambda A: p2_setup(A, opt), _post=lambda A: tlb(A, opt), _fill=fill, _fused=1); opt.setdefault("st", "sc1")
    ld = opt.get("ld", "sc1")
    A = Asm()
    A("s_cmp_ge_u32 s2, 256\ns_cbranch_scc1 L_end")
    stamp(A, opt, 0)
    load_ptrs(A)
    if opt.get("cp"):
        A("""s_cmp_ge_u32 s2, 8
s_cbranch_scc1 L_nocp
s_getpc_b64 s[90:91]
L_pc:
v_lshlrev_b32 v2, 7, v0
v_mov_b32 v3, s91
v_add_co_u32 v2, vcc, s90, v2
v_addc_co_u32 v3, vcc, 0, v3, vcc
v_cmp_gt_u32 vcc, (L_end - L_pc) / 128, v0
s_and_saveexec_b64 s[90:91], vcc
s_cbranch_execz L_cp2
global_load_dword v206, v[2:3], off
L_cp2:
s_mov_b64 exec, -1
L_nocp:""")
    A("s_memrealtime s[92:93]")
    A("v_lshrrev_b32 v2, 6, v0\nv_and_b32 v1, 63, v0\ns_and_b32 s45, s2, 1\nv_readfirstlane_b32 s44, v2\ns_bfe_u32 s46, s2, 0x20001\ns_lshr_b32 s47, s2, 3\ns_waitcnt lgkmcnt(0)")
    srd(A, 40, 26, WS_BYTES)
    A("s_movk_i32 s26, 256\ns_mov_b32 s27, 0x20000")
    A("s_or_b32 s88, s2, s44\ns_cbranch_scc1 L_nopub\ns_or_b32 s92, s92, 1\nv_mov_b32 v3, s92\ns_mov_b64 exec, 1\nbuffer_store_dword v3, off, s[24:27], 0 sc1\ns_mov_b64 exec, -1\nL_nopub:")
    A("s_cmp_ge_u32 s47, 24\ns_cbranch_scc1 L_dft")
    qkv_role(A, opt)
    A("s_branch L_k1_fin\nL_dft:")
    A.vm = []; A.lg = []
    dft_role(A, opt)
    A("L_k1_fin:")
    A.vm = []; A.lg = []
    stamp(A, opt, 3)
    i1 = len(A.L)
    for i in range(4): A(f"v_add_u32 v{84+i}, {WA}, v{22+i}")
    A("""s_waitcnt vmcnt(0)
v_readfirstlane_b32 s101, v205
s_cmp_lg_u32 s101, 0
s_cbranch_scc1 L_have
s_mov_b32 s74, 0x40000
L_renonce:
s_sub_u32 s74, s74, 1
s_cbranch_scc1 L_have
buffer_load_dword v205, off, s[24:27], 0 sc1
s_waitcnt vmcnt(0)
v_readfirstlane_b32 s101, v205
s_cmp_eq_u32 s101, 0
s_cbranch_scc1 L_renonce
L_have:
s_barrier
s_cmp_lg_u32 s44, 1
s_cbranch_scc1 L_noflag
v_mov_b32 v4, s101
s_mov_b32 exec_hi, 0
s_mov_b32 exec_lo, s3
buffer_store_dword v4, v10, s[40:43], 0 offen sc1
s_mov_b64 exec, -1
L_noflag:""")
    stamp(A, opt, 4)
    A("s_cmp_lt_u32 s2, 32\ns_cbranch_scc1 L_fin")
    rds = []
    for h in range(16):
        for ct in range(4):
            for j in range(2):
                x = ct ^ (2*(h&1))
                rds.append(f"ds_read_b64_tr_b16 {ar(16*h+4*ct+2*j,2)}, v{84+x if h < 8 else 22+x} offset:{(28*h+16*j - (0 if h < 8 else 224))*128}")
    pp = int(opt.get("pp", 64))
    for i, r in enumerate(rds):
        if i == pp: A("s_cmp_lg_u32 s44, 0\ns_cbranch_scc1 L_p0\ns_mov_b32 exec_hi, 0xff\n" + PL + "\ns_mov_b64 exec, -1\nL_p0:")
        A(r)
    A("s_cmp_lg_u32 s44, 0\ns_cbranch_scc1 L_go\ns_mov_b32 exec_hi, 0xff")
    poll(A, "L_pa", "exec", pp < 128)
    A("s_mov_b64 exec, -1\nL_go:\ns_waitcnt lgkmcnt(0)\ns_barrier")
    stamp(A, opt, 5)
    for f in k2_y(A, ld): f()
    A.vmem(f"buffer_load_dword v27, v18, s[40:43], 0 offen {ld}", "g")
    for hp in range(8):
        for hf in range(2):
            A(f"s_add_u32 m0, s56, {hp*2048 + hf*1024 - hp*128}\ns_nop 0")
            A.vmem(f"buffer_load_dwordx4 v{17+4*hf}, s[40:43], 0 offen offset:{hp*128} {ld} lds", ("o", hp))
        if hp == int(opt.get("yb", 7)): A.wait_vm("y"); A("s_barrier")
    for f in k2_rd_y(A, 0): f()
    for ks in range(4):
        interleave(A, k2_mf_y(A, ks), k2_rd_y(A, ks+1) if ks < 3 else [], every=2)
    def rd(hp):
        def f(hd):
            if hd == 0: A.wait_vm(("o", hp))
            A.ds(f"ds_read_b128 {vr(OF+8*hp+4*hd,4)}, v{9+2*hd} offset:{hp*2048}", ("of", 2*hp+hd))
        return [lambda: f(0), lambda: f(1)]
    def mf(h):
        def g(ct):
            if ct == 0: A.wait_lg(("of", h))
            d = vr(AB+4*ct, 4)
            A(f"v_mfma_f32_16x16x32_bf16 {d}, {ar(16*h+4*ct,4)}, {vr(OF+4*h,4)}, {'0' if h == 0 else d}")
        return [lambda ct=ct: g(ct) for ct in range(4)]
    for f in rd(0): f()
    for hp in range(8):
        interleave(A, mf(2*hp) + mf(2*hp+1), rd(hp+1) if hp < 7 else [], every=2, start=1)
        if hp == 0: stamp(A, opt, 6)
    k2_final(A)
    A.L[i1:] = [ren(l) for l in A.L[i1:]]
    A("L_fin:")
    return A
```

```python
from asmlib import *
O_WS, Y_WS, G_WS, T_WS = 0, 2 << 20, 4 << 20, 5 << 20
WS_BYTES = 6 << 20
XB, WB, HB = 2048 * 896, 448 * 2688, 448 * 896

def load_ptrs(A):
    A("s_load_dwordx16 s[4:19], s[0:1], 0\ns_load_dwordx8 s[20:27], s[0:1], 64")

def stamp(A, opt, slot):
    if not opt.get("stamp"): return
    A(f"s_memrealtime s[{80+2*slot}:{81+2*slot}]")

def stamp_store(A, opt, base, nst):
    if not opt.get("stamp"): return
    A("s_waitcnt lgkmcnt(0)")
    A(f"s_lshl_b32 s3, s2, 2\ns_add_u32 s3, s3, s44\ns_lshl_b32 s3, s3, 5\ns_add_u32 s3, s3, {T_WS + base}")
    for i in range(nst):
        A(f"v_mov_b32 v1, s{80+2*i}\nv_mov_b32 v2, s3\nbuffer_store_dword v1, v2, s[40:43], 0 offen offset:{4*i}")

def interleave(A, main, fill, every=1, start=0):
    fill = list(fill); n = len(main)
    for i, m in enumerate(main):
        m()
        if i >= start:
            left = n - i
            k = -(-len(fill) // left) if every == 0 else every
            for _ in range(min(k, len(fill))): fill.pop(0)()
    for f in fill: f()

def main_loop(A, opt, dma, reads, mf, late=False):
    P, G = int(opt.get("P", 3)), int(opt.get("G", 4))
    fifo = [(c - 4, x) for c in range(P, 7) for x in dma(c)]
    extra = [(c, x) for c in (3, 4) for x in opt["_fill"](A, c)] if opt.get("_fill") else []
    nl = int(opt.get("wl", 16)) if late or opt.get("dl") else 0
    if opt.get("to"):
        pos = int(opt["to"]) * len(dma(0)); fifo.insert(pos, (-1, opt["_fill"](A, 2)[0]))
    fifo += extra[:len(extra) - nl]
    if opt.get("_pre"): opt["_pre"](A)
    spread(A, A.i_pro, [x for c in range(int(opt.get("P0", 1)), P) for x in dma(c)], int(opt.get("ps", 20)))
    if opt.get("_post"): opt["_post"](A)
    A.wait_vm(("d", 0)); A("s_barrier")
    stamp(A, opt, 1)
    for f in reads(0): f()
    free = -1; last = -G; i = 0
    for n in range(14):
        m = mf(n); c = n // 2
        rd = reads(n+1) if n < 13 and not n & 1 else []
        for j, g in enumerate(m):
            if n & 1 and n < 13 and j == 6:
                assert all(t != ("d", c+1) for _, (_, _, t) in fifo), (n, "chunk not issued")
                A.wait_lg0(); A.wait_vm(("d", c+1)); A("s_barrier"); free = c
                rd = reads(n+1)
            go = fifo and fifo[0][0] <= free and i - last >= G
            tt = go and fifo[0][1][2] == "t"
            if go and not tt: fifo[0][1][0]()
            g()
            if tt: fifo[0][1][0]()
            if go: fifo.pop(0)[1][1](); last = i
            k = 0 if go else (2 if len(rd) > len(m) - j - 3 else 1)
            for _ in range(min(k, len(rd))): rd.pop(0)()
            i += 1
        for f in rd: f()
    for _, x in fifo: x[0](); A("s_nop 0"); x[1]()
    stamp(A, opt, 2)
    return [x for _, x in extra[len(extra) - nl:]]

def spread(A, i0, items, step):
    old = A.L[i0:]; del A.L[i0:]; masked = False; k = 0
    live = [False] * (len(old) + 1)
    for j in range(len(old) - 1, -1, -1):
        l = old[j]
        live[j] = True if l.startswith(("s_cselect", "s_cbranch_scc")) else (False if l.startswith(("s_cmp", "s_bitcmp")) else live[j+1])
    for j, l in enumerate(old):
        if masked is False and items and j >= k and not live[j] and not l.startswith("s_mov_b32 exec") and "s60" not in l:
            p, ld, _ = items.pop(0); p(); A(l); ld(); k = j + step
        else: A(l)
        if l.startswith("s_mov_b32 exec_lo"): masked = True
        if l.startswith("s_mov_b64 exec, -1"): masked = False
    assert not items

def warm(A, opt, dft):
    t = opt.get("tch", "")
    A("s_lshl_b32 s59, s47, 2\ns_add_u32 s59, s59, s44")
    if "W" in t:
        srd(A, 64, 16, WB)
        A("""v_and_b32 v2, 15, v1
v_lshrrev_b32 v3, 4, v1
v_lshl_add_u32 v3, v3, 7, s59
v_mul_u32_u24 v4, 11, v2
v_lshrrev_b32 v4, 5, v4
s_movk_i32 s60, 2688
s_mul_i32 s61, s46, 224
v_mul_u32_u24 v3, s60, v3
v_mul_u32_u24 v2, 108, v2
v_mul_u32_u24 v4, 572, v4
s_mov_b32 exec_lo, 0x1ff01ff
v_add3_u32 v3, v3, v2, v4
s_mov_b32 exec_hi, 0x1ff01ff""")
        A.vmem("buffer_load_dword v206, v3, s[64:67], s61 offen", "t")
        A("s_mov_b64 exec, -1")
    if "X" in t:
        A("""s_lshl_b32 s60, s59, 4
s_add_u32 s60, s60, s45
s_mul_i32 s60, s60, 896
v_lshrrev_b32 v2, 3, v1
v_and_b32 v3, 7, v1
v_mul_u32_u24 v2, 1792, v2
s_mov_b32 exec_lo, XM
v_lshl_add_u32 v2, v3, 7, v2
s_mov_b32 exec_hi, XM""".replace("XM", hex(0x01010101 * int(opt.get("xm", "0x7f"), 16))))
        A.vmem("buffer_load_dword v206, v2, s[28:31], s60 offen", "t")
        A("s_mov_b64 exec, -1")
    if "H" in t and dft:
        A("""s_sub_u32 s59, s59, 96
s_lshl_b32 s60, s46, 6
s_lshl_b32 s59, s59, 1
s_add_u32 s60, s60, s59
s_mul_i32 s60, s60, 896
v_lshlrev_b32 v2, 7, v1
s_mov_b64 exec, 0x3fff""")
        srd(A, 64, 10, HB)
        A.vmem("buffer_load_dword v206, v2, s[64:67], s60 offen", "t")
        A.vmem("buffer_load_dword v206, v2, s[36:39], s60 offen", "t")
        A("s_mov_b64 exec, -1")

def prologue(A, opt, dma, dft=False):
    for c in range(int(opt.get("P0", 1)) + 1):
        if c == int(opt.get("tp", 0)): warm(A, opt, dft)
        if c == int(opt.get("P0", 1)): break
        for pre, ld, _ in dma(c):
            n0 = len(A.L); pre()
            if len(A.L) - n0 < 2: A("s_nop 0")
            ld()
    A.i_pro = len(A.L)

def band_masks():
    ma, mb, mb0 = [], [], []
    for r in range(4):
        a = b = b0 = 0
        for lane in range(64):
            l, kg = lane & 15, lane >> 4
            kp = 4 * kg + r
            if kp >= l + 9: a |= 1 << lane
            if 0 <= l - kp <= 7:
                b |= 1 << lane
                if kp >= 7: b0 |= 1 << lane
        ma.append(a); mb.append(b); mb0.append(b0)
    return ma, mb, mb0

def qkv_role(A, opt):
    st = opt.get("st", "")
    SL = 36864
    srd(A, 28, 4, XB); srd(A, 32, 16, WB)
    A("""
s_and_b32 s48, s47, 1
s_lshl_b32 s49, s46, 1
s_add_u32 s48, s48, s49
s_lshr_b32 s49, s47, 1
s_lshr_b32 s50, s44, 1
s_and_b32 s51, s44, 1
v_lshrrev_b32 v2, 3, v1
v_and_b32 v3, 7, v1
v_lshrrev_b32 v4, 1, v2
v_lshlrev_b32 v5, 1, v4
v_xor_b32 v5, v3, v5
v_lshrrev_b32 v6, 2, v2
v_and_b32 v7, 3, v2
v_lshl_add_u32 v6, v6, 3, v7
s_lshl_b32 s52, s50, 5
s_lshl_b32 s53, s51, 2
s_add_u32 s52, s52, s53
v_add_u32 v6, s52, v6
s_movk_i32 s53, 2688
s_mul_i32 s54, s48, 112
v_mul_u32_u24 v6, s53, v6
v_lshl_add_u32 v6, v5, 4, v6
v_add_u32 v6, s54, v6
v_cmp_eq_u32 vcc, 7, v5
v_bfrev_b32 v7, 1
s_mul_i32 s55, s50, 12288
v_cndmask_b32 v32, v6, v7, vcc
s_lshl_b32 s56, s51, 11
s_add_u32 s55, s55, s56
s_mul_i32 s56, s44, 3072
s_add_u32 s56, s56, 24576
s_mul_i32 s57, s49, 86
s_mul_i32 s58, s44, 24
s_add_u32 s57, s57, s58
s_sub_u32 s57, s57, 7
s_lshl_b32 s57, s57, 1
s_add_u32 s57, s57, s45
s_mul_i32 s57, s57, 896
s_movk_i32 s58, 1792
v_mul_u32_u24 v8, s58, v2
v_add_u32 v8, s57, v8
v_xor_b32 v9, v3, v4
s_lshl_b32 s59, s51, 2
v_xor_b32 v9, s59, v9
v_xor_b32 v10, 4, v9
v_lshl_add_u32 v33, v9, 4, v8
v_lshl_add_u32 v34, v10, 4, v8
v_add_u32 v34, 14336, v34
v_add_u32 v35, 28672, v33""")
    def dma(c):
        slot = c % 4; out = []
        for kp in range(2):
            for sec in range(3):
                def pre(kp=kp, sec=sec):
                    A(f"s_add_u32 m0, s55, {slot*SL + sec*4096 + kp*1024 - sec*896}")
                    if sec == 0: A(f"s_mov_b32 s60, {c*172032 + kp*43008}")
                out.append((pre, lambda sec=sec: A.vmem(f"buffer_load_dwordx4 v32, s[32:35], s60 offen offset:{sec*896} {opt.get('pw','')} lds", ("d", c)), ("d", c)))
        for i in range(3):
            out.append((lambda i=i: A(f"s_add_u32 m0, s56, {slot*SL + i*1024 - c*128}"),
                        lambda i=i: A.vmem(f"buffer_load_dwordx4 v{33+i}, s[28:31], 0 offen offset:{c*128} {opt.get('px','')} lds", ("d", c)), ("d", c)))
        return out
    prologue(A, opt, dma)
    A(f"""
v_lshrrev_b32 v2, 4, v1
v_bfe_u32 v3, v1, 2, 2
v_and_b32 v4, 3, v1
v_and_b32 v5, 1, v2
v_lshl_add_u32 v5, v5, 2, v3
v_lshrrev_b32 v6, 1, v2
v_lshlrev_b32 v6, 10, v6
v_lshl_add_u32 v6, v5, 7, v6
v_and_b32 v7, 6, v5
s_mul_i32 s61, s51, 56
v_lshl_add_u32 v8, v4, 3, s61
v_add_u32 v9, 32, v8
v_lshrrev_b32 v10, 4, v8
v_xor_b32 v10, v10, v7
v_and_b32 v8, 8, v8
v_lshl_add_u32 v10, v10, 4, v8
v_add_u32 v16, v6, v10
v_lshrrev_b32 v10, 4, v9
v_xor_b32 v10, v10, v7
v_lshl_add_u32 v10, v10, 4, v8
v_add_u32 v17, v6, v10
v_and_b32 v3, 15, v1
v_lshrrev_b32 v4, 1, v3
v_xor_b32 v4, v4, v2
s_mul_i32 s61, s50, 6144
s_add_u32 s61, s61, 24576
v_lshlrev_b32 v5, 7, v3
v_add_u32 v5, s61, v5
v_lshl_add_u32 v18, v4, 4, v5
v_xor_b32 v19, 64, v18""")
    for s in range(1, 4):
        for i in range(4): A(f"v_add_u32 v{16+4*s+i}, {s*SL}, v{16+i}")
    A(f"""
s_mul_i32 s61, s44, 3072
s_add_u32 s61, s61, 36864
v_lshrrev_b32 v4, 2, v3
v_xor_b32 v4, v4, v2
v_lshlrev_b32 v4, 4, v4
v_lshl_add_u32 v4, v3, 6, v4
v_add_u32 v14, s61, v4
v_xor_b32 v4, v1, v2
v_lshl_add_u32 v15, v4, 4, s61
v_lshrrev_b32 v3, 2, v1
s_mul_i32 s61, s50, 48
v_add_u32 v4, s61, v3
s_mul_i32 s62, s49, 86
s_sub_u32 s62, s62, 7
v_add_u32 v5, s62, v4
v_and_b32 v6, 15, v5
v_lshl_add_u32 v6, v6, 1, s45
v_ashrrev_i32 v7, 4, v5
v_lshl_add_u32 v6, v6, 6, v7
s_lshl_b32 s63, s48, 1
s_add_u32 s63, s63, s51
v_lshl_add_u32 v6, v6, 4, s63
v_and_b32 v7, 3, v1
v_lshl_add_u32 v6, v6, 2, v7
v_lshlrev_b32 v6, 4, v6
v_bfrev_b32 v7, 1
s_sub_u32 s63, 1031, s62
s_sub_u32 s63, s63, 14
s_min_u32 s63, s63, 86""")
    for T in range(3):
        A(f"v_add_u32 v8, {16*T-7}, v4\nv_cmp_gt_u32 vcc, s63, v8\nv_add_u32 v9, {1024*T}, v6\ns_nop 0\nv_cndmask_b32 v{11+T}, v7, v9, vcc")
    ma, mb, mb0 = band_masks()
    A("s_or_b32 s61, s49, s50\ns_cmp_eq_u32 s61, 0")
    for r in range(4):
        for hi in range(2):
            x, y = (mb0[r] >> (32*hi)) & 0xffffffff, (mb[r] >> (32*hi)) & 0xffffffff
            A(f"s_mov_b32 s{72+2*r+hi}, {y:#x}")
            if x != y: A(f"s_cselect_b32 s{72+2*r+hi}, {x:#x}, s{72+2*r+hi}")
    FS = [36, 72]
    def reads(n):
        c, ksl = divmod(n, 2); b = 16 + 4 * (c % 4); f = FS[n & 1]; out = []
        for t in range(3):
            out.append(lambda t=t: A.ds(f"ds_read_b128 {vr(f+4*t,4)}, v{b+2+ksl} offset:{t*2048}", ("x", n)))
        for sec in range(3):
            for ft in range(2):
                for j in range(2):
                    out.append(lambda sec=sec, ft=ft, j=j: A.ds(
                        f"ds_read_b64_tr_b16 {vr(f+12+(sec*2+ft)*4+2*j,2)}, v{b+ft} offset:{((ksl*3+sec)*2+j)*2048}", ("w", n, sec, ft)))
        return out
    def mf(n):
        f = FS[n & 1]; out = []
        for sec in range(3):
            for ft in range(2):
                for t in range(3):
                    def g(sec=sec, ft=ft, t=t):
                        if t == 0 and ft == 0: A.wait_lg(("x", n), ("w", n, sec, 0), ("w", n, sec, 1))
                        d = 108 + sec*24 + (t*2+ft)*4; wv = f+12+(sec*2+ft)*4; xv = f+4*t
                        A(mfma(d, wv, xv, "0" if n == 0 else None) if sec < 2 else mfma(d, xv, wv, "0" if n == 0 else None))
                    out.append(g)
        return out
    late = main_loop(A, opt, dma, reads, mf, True); i0 = len(A.L)
    Q = lambda t: 36 + 4*t
    K = lambda T: 48 + 4*(T+1)
    V = lambda ft, T: 64 + 8*ft + 2*(T+1)
    S = lambda T: 84 + 8*T
    acc = lambda sec, t, ft: 108 + sec*24 + (t*2+ft)*4
    def pk(d, s): A(f"v_cvt_pk_bf16_f32 v{d}, v{s}, v{s+1}\nv_cvt_pk_bf16_f32 v{d+1}, v{s+2}, v{s+3}")
    for r in range(4):
        for hi in range(2):
            A(f"s_mov_b32 s{56+2*r+hi}, {(ma[r] >> (32*hi)) & 0xffffffff:#x}\ns_mov_b32 s{64+2*r+hi}, {(mb[r] >> (32*hi)) & 0xffffffff:#x}")
    for ft in range(2): pk(K(2)+2*ft, acc(1, 2, ft))
    A("v_lshlrev_b32 v2, 4, v1\ns_lshl_b32 s52, s44, 11\ns_add_u32 s52, s52, 147456\nv_add_u32 v3, s52, v2\ns_lshl_b32 s52, s51, 11\ns_add_u32 s52, s52, 147456\nv_add_u32 v4, s52, v2")
    for ft in range(2): pk(V(ft, 2), acc(2, 2, ft))
    A.ds(f"ds_write_b128 v3, {vr(K(2),4)}", "hw")
    A.ds(f"ds_write_b64 v3, {vr(V(0,2),2)} offset:1024", "hw")
    A.ds(f"ds_write_b64 v3, {vr(V(1,2),2)} offset:1032", "hw")
    for t in range(3):
        for ft in range(2): pk(Q(t)+2*ft, acc(0, t, ft))
    for t in range(2):
        for ft in range(2): pk(K(t)+2*ft, acc(1, t, ft)); pk(V(ft, t), acc(2, t, ft))
    A("s_mov_b32 exec_lo, 0\ns_mov_b32 exec_hi, 0xffff0000")
    for t in range(3): A(f"v_mov_b32 v{Q(t)+2}, 0\nv_mov_b32 v{Q(t)+3}, 0")
    A("s_mov_b64 exec, -1")
    for i in range(4): A(f"v_mov_b32 v{80+i}, 0x3f803f80")
    A("v_mov_b32 v10, 0xf149f2ca")
    A.wait_lg0(); A("s_barrier")
    A.ds(f"ds_read_b128 {vr(K(-1),4)}, v4", "hk")
    A.ds(f"ds_read_b64 {vr(V(0,-1),2)}, v4 offset:1024", "hv")
    A.ds(f"ds_read_b64 {vr(V(1,-1),2)}, v4 offset:1032", "hv")
    for T in (2, 1):
        A(mfma(S(T), K(T-1), Q(T), "0")); A(mfma(S(T)+4, K(T), Q(T), "0"))
    A(mfma(S(0)+4, K(0), Q(0), "0"))
    A.wait_lg("hk"); A(mfma(S(0), K(-1), Q(0), "0"))
    A("s_mov_b32 s52, 0x3e8b97f6\ns_nop 2")
    U = (2, 1, 0)
    for T in U:
        if T == 0: A("s_nop 0")
        for i in range(8):
            mk = 56 + 2*i if i < 4 else ((72 if T == 0 else 64) + 2*(i-4))
            A(f"v_cndmask_b32 v{S(T)+i}, v10, v{S(T)+i}, s[{mk}:{mk+1}]")
    M = lambda T: 156 + T
    TT = lambda T: 160 + T
    for T in U: A(f"v_max3_f32 v{M(T)}, v{S(T)}, v{S(T)+1}, v{S(T)+2}")
    for T in U: A(f"v_max3_f32 v{M(T)}, v{M(T)}, v{S(T)+3}, v{S(T)+4}")
    for T in U: A(f"v_max3_f32 v{M(T)}, v{M(T)}, v{S(T)+5}, v{S(T)+6}")
    for T in U: A(f"v_max_f32 v{M(T)}, v{M(T)}, v{S(T)+7}")
    for sw in (16, 32):
        for T in U: A(f"v_mov_b32 v{TT(T)}, v{M(T)}")
        for T in U: A(f"v_permlane{sw}_swap_b32 v{M(T)}, v{TT(T)}")
        for T in U: A(f"v_max_f32 v{M(T)}, v{M(T)}, v{TT(T)}")
    for T in U: A(f"v_mul_f32 v{M(T)}, s52, v{M(T)}")
    P = lambda T: 108 + 4*T
    O = lambda T: 120 + 12*T
    A.wait_lg0()
    for T in U:
        for i in range(8): A(f"v_fma_f32 v{S(T)+i}, v{S(T)+i}, s52, -v{M(T)}")
        for i in range(8): A(f"v_exp_f32 v{S(T)+i}, v{S(T)+i}")
        for i in range(4): A(f"v_cvt_pk_bf16_f32 v{P(T)+i}, v{S(T)+2*i}, v{S(T)+2*i+1}")
        A("s_nop 1")
        A(mfma(O(T)+8, 80, P(T), "0")); A(mfma(O(T), V(0, T-1), P(T), "0")); A(mfma(O(T)+4, V(1, T-1), P(T), "0"))
    spread(A, i0, late, int(opt.get("ws", 14)))
    A("s_mov_b32 s52, -1\ns_mov_b32 s53, 0xffff")
    for T in U:
        if T == 0: A("s_nop 1")
        A(f"v_rcp_f32 v{O(T)+8}, v{O(T)+8}\ns_nop 0")
        for i in range(8): A(f"v_mul_f32 v{O(T)+i}, v{O(T)+i}, v{O(T)+8}")
        d = 164 + 4*T
        for i in range(4): A(f"v_cvt_pk_bf16_f32 v{d+i}, v{O(T)+2*i}, v{O(T)+2*i+1}")
        A(f"v_cndmask_b32 v{d+2}, 0, v{d+2}, s[52:53]\nv_cndmask_b32 v{d+3}, 0, v{d+3}, s[52:53]")
        A.ds(f"ds_write_b128 v14, {vr(d,4)} offset:{1024*T}", ("tw", T))
        A.ds(f"ds_read_b128 {vr(180+4*T,4)}, v15 offset:{1024*T}", ("tr", T))
        for X in ([T+1] if T < 2 else []) + ([0] if T == 0 else []):
            A.wait_lg(("tr", X))
            A.vmem(f"buffer_store_dwordx4 {vr(180+4*X,4)}, v{11+X}, s[40:43], 0 offen {st}", "st")

def dft_role(A, opt):
    st = opt.get("st", "")
    SL = 32768
    srd(A, 28, 4, XB); srd(A, 32, 10, HB); srd(A, 36, 12, HB)
    A(f"""
s_sub_u32 s48, s47, 24
s_lshl_b32 s49, s48, 3
s_add_u32 s49, s49, s45
s_lshl_b32 s50, s46, 2
s_add_u32 s50, s50, s44
s_lshl_b32 s51, s50, 4
s_cmp_eq_u32 s50, 15
s_cselect_b32 s32, s20, s32
s_cselect_b32 s33, s21, s33
s_cselect_b32 s34, 896, s34
s_cselect_b32 s52, 0, s51
v_lshrrev_b32 v2, 3, v1
v_and_b32 v3, 7, v1
v_lshrrev_b32 v4, 1, v2
v_xor_b32 v4, v3, v4
v_lshlrev_b32 v4, 4, v4
s_lshl_b32 s53, s44, 1
s_add_u32 s53, s53, s49
s_mul_i32 s53, s53, 896
s_mov_b32 s54, 57344
v_mad_u32_u24 v5, v2, s54, v4
v_add_u32 v32, s53, v5
v_xor_b32 v33, 64, v32
v_add_u32 v33, {8*57344}, v33
s_movk_i32 s54, 896
v_mad_u32_u24 v5, v2, s54, v4
s_mul_i32 s55, s52, 896
v_add_u32 v34, s55, v5
v_xor_b32 v35, 64, v34
v_add_u32 v35, 7168, v35
s_lshl_b32 s56, s44, 12
s_add_u32 s56, s56, 1024
s_lshl_b32 s57, s44, 11
s_add_u32 s57, s57, 17408
s_mov_b32 s58, 917504""")
    def dma(c):
        slot = c % 4; out = []
        for cs in range(2):
            for hf in range(2):
                out.append((lambda cs=cs, hf=hf: A(f"s_add_u32 m0, s57, {slot*SL + cs*8192 + hf*1024 - c*128}"),
                            lambda cs=cs, hf=hf: A.vmem(f"buffer_load_dwordx4 v{34+hf}, s[{32+4*cs}:{35+4*cs}], 0 offen offset:{c*128} lds", ("d", c)), ("d", c)))
        for ts in range(2):
            for hf in range(2):
                out.append((lambda ts=ts, hf=hf: A(f"s_add_u32 m0, s56, {slot*SL + ts*2048 + hf*1024 - c*128}"),
                            lambda ts=ts, hf=hf: A.vmem(f"buffer_load_dwordx4 v{32+hf}, s[28:31], {'s58' if ts else '0'} offen offset:{c*128} lds", ("d", c)), ("d", c)))
        return out
    prologue(A, opt, dma, True)
    tch = opt.get("tch", "")
    if "w" in tch:
        r0 = 64 * int(opt.get("P", 3)); nr = (448 - r0) // 32
        srd(A, 64, 16, WB)
        A(f"""s_lshl_b32 s59, s48, 2
s_add_u32 s59, s59, s44
s_add_u32 s59, s59, {r0}
v_and_b32 v2, 15, v1
v_lshrrev_b32 v3, 4, v1
v_lshl_add_u32 v4, v2, 5, s59
s_movk_i32 s59, 2688
s_mul_i32 s60, s46, 224
v_mul_u32_u24 v4, s59, v4
s_movk_i32 s59, 896
v_mad_u32_u24 v4, v3, s59, v4
v_add_u32 v4, s60, v4
v_cmp_gt_u32 vcc, {nr}, v2
v_cmp_gt_u32 s[60:61], 3, v3
v_bfrev_b32 v5, 1
s_and_b64 vcc, vcc, s[60:61]
v_cndmask_b32 v4, v5, v4, vcc""")
        for o in (0, 112, 220): A.vmem(f"buffer_load_dword v206, v4, s[64:67], 0 offen offset:{o}", "t")
    if "x" in tch:
        A(f"v_and_b32 v2, 31, v1\nv_lshrrev_b32 v3, 5, v1\ns_mov_b32 s59, 57344\nv_lshlrev_b32 v3, 7, v3\nv_mad_u32_u24 v4, v2, s59, v3\nv_add_u32 v4, s53, v4")
        for c in range(int(opt.get("P", 3)), 7, 2): A.vmem(f"buffer_load_dword v206, v4, s[28:31], 0 offen offset:{min(c, 5)*128}", "t")
    A("""
v_lshrrev_b32 v2, 4, v1
v_and_b32 v3, 15, v1
v_lshrrev_b32 v4, 1, v3
v_xor_b32 v4, v4, v2
v_lshlrev_b32 v5, 7, v3
v_lshl_add_u32 v16, v4, 4, v5
v_xor_b32 v17, 64, v16
v_add_u32 v18, s57, v16
v_add_u32 v19, s57, v17
v_add_u32 v16, 1024, v16
v_add_u32 v17, 1024, v17""")
    for s in range(1, 4):
        for i in range(4): A(f"v_add_u32 v{16+4*s+i}, {s*SL}, v{16+i}")
    A("v_cvt_f32_u32 v4, v3\nv_mul_f32 v4, 0x3d000000, v4\nv_add_f32 v5, 0.5, v4\nv_lshlrev_b32 v6, 2, v2\nv_cvt_f32_u32 v6, v6")
    import struct
    fl = lambda x: hex(struct.unpack("<I", struct.pack("<f", x))[0])
    for i in range(8): A(f"v_add_f32 v{36+i}, {fl(16*(i>>2) + (i&3))}, v6")
    for kt in range(2):
        for i in range(8): A(f"v_mul_f32 v{44+i}, v{4+kt}, v{36+i}")
        for i in range(8): A(f"v_fract_f32 v{44+i}, v{44+i}")
        for i in range(8): A(f"v_cos_f32 v{52+i}, v{44+i}")
        for i in range(8): A(f"v_sin_f32 v{60+i}, v{44+i}")
        for i in range(4): A(f"v_cvt_pk_bf16_f32 v{180+4*kt+i}, v{52+2*i}, v{53+2*i}")
        for i in range(4): A(f"v_cvt_pk_bf16_f32 v{188+4*kt+i}, v{60+2*i}, v{61+2*i}")
        for i in range(4): A(f"v_xor_b32 v{196+4*kt+i}, 0x80008000, v{188+4*kt+i}")
    A(f"""
s_lshl_b32 s59, s48, 1
s_add_u32 s59, s59, s45
s_lshl_b32 s59, s59, 12
s_lshl_b32 s60, s51, 4
s_add_u32 s59, s59, s60
s_add_u32 s59, s59, {Y_WS}
v_lshlrev_b32 v11, 18, v2
v_lshl_add_u32 v11, v3, 4, v11
v_add_u32 v11, s59, v11
s_lshl_b32 s59, s49, 7
s_add_u32 s59, s59, {G_WS}
v_lshl_add_u32 v12, v2, 4, s59
v_cmp_eq_u32 vcc, 0, v3
v_bfrev_b32 v7, 1
s_nop 0
v_cndmask_b32 v12, v7, v12, vcc""")
    FS = [36, 76]
    def reads(n):
        c, ksl = divmod(n, 2); b = 16 + 4 * (c % 4); f = FS[n & 1]; out = []
        for cs in range(2):
            out.append(lambda cs=cs: A.ds(f"ds_read_b128 {vr(f+32+4*cs,4)}, v{b+2+ksl} offset:{cs*8192}", ("w", n)))
        for rt in range(8):
            out.append(lambda rt=rt: A.ds(f"ds_read_b128 {vr(f+4*rt,4)}, v{b+ksl} offset:{rt*2048}", ("x", n, rt)))
        return out
    def mf(n):
        f = FS[n & 1]; out = []
        for rt in range(8):
            for cs in range(2):
                def g(rt=rt, cs=cs):
                    if cs == 0 and rt % 2 == 0: A.wait_lg(("w", n), ("x", n, rt), ("x", n, rt+1))
                    A(mfma(116 + 32*cs + 4*rt, f+4*rt, f+32+4*cs, "0" if n == 0 else None))
                out.append(g)
        return out
    for p, ld, _ in main_loop(A, opt, dma, reads, mf): p(); ld()
    A("s_cmp_eq_u32 s50, 15\ns_cbranch_scc1 L_gate\ns_nop 5")
    for u in range(4):
        for cs in range(2):
            for ts in range(2):
                s = 116 + 32*cs + 4*(2*u+ts); d = 36 + 16*cs + 4*u + 2*ts
                A(f"v_cvt_pk_bf16_f32 v{d}, v{s}, v{s+1}\nv_cvt_pk_bf16_f32 v{d+1}, v{s+2}, v{s+3}")
    A("s_nop 1")
    YR = lambda u, kt: 116 + (u*2+kt)*4
    for kt in range(2):
        for u in range(4):
            A(mfma(YR(u, kt), 180+4*kt, 36+4*u, "0")); A(mfma(YR(u, kt)+32, 196+4*kt, 36+4*u, "0"))
        for u in range(4):
            A(mfma(YR(u, kt), 188+4*kt, 52+4*u)); A(mfma(YR(u, kt)+32, 180+4*kt, 52+4*u))
    for kt in range(2):
        if kt == 1: A("s_nop 0")
        for r in range(4):
            d = 68 + 4*(kt*4+r)
            for ri in range(2):
                for up in range(2):
                    A(f"v_cvt_pk_bf16_f32 v{d+2*ri+up}, v{YR(2*up,kt)+32*ri+r}, v{YR(2*up+1,kt)+32*ri+r}")
            A(f"s_mov_b32 s60, {(16*kt+r)*65536}")
            A.vmem(f"buffer_store_dwordx4 {vr(d,4)}, v11, s[40:43], s60 offen {st}", "st")
    A("s_branch L_k1_fin\nL_gate:\ns_nop 7")
    for rt in range(8):
        A(f"buffer_store_dwordx4 {vr(116+4*rt,4)}, v12, s[40:43], 0 offen offset:{(rt>>1)*256 + (rt&1)*64} {st}")

def k1_body(opt):
    A = Asm()
    A("s_cmp_ge_u32 s2, 256\ns_cbranch_scc1 L_k1_end")
    stamp(A, opt, 0)
    load_ptrs(A)
    A("v_lshrrev_b32 v2, 6, v0\nv_and_b32 v1, 63, v0\ns_and_b32 s45, s2, 1\nv_readfirstlane_b32 s44, v2\ns_bfe_u32 s46, s2, 0x20001\ns_lshr_b32 s47, s2, 3\ns_waitcnt lgkmcnt(0)")
    srd(A, 40, 26, WS_BYTES)
    A("s_cmp_ge_u32 s47, 24\ns_cbranch_scc1 L_dft")
    qkv_role(A, opt)
    A("s_branch L_k1_fin\nL_dft:")
    A.vm = []; A.lg = []
    dft_role(A, opt)
    A("L_k1_fin:")
    return A
```

```python
from asmlib import *
from gen_k1 import *
from gen_k2 import *
FL_WS = G_WS + 65536
import sys
FS = int(dict(a.split('=') for a in sys.argv[2:]).get('fs', 32)); FSH = FS.bit_length() - 1
FR_ST = 160 * FS
WA = 110592
OB = 77824
def pre(A):
    A(f"""
s_mov_b32 s96, s18
s_mov_b32 s97, s19
s_cmp_lt_u32 s2, 32
s_cselect_b32 s98, 0, {HB}
s_mov_b32 s99, 0x20000
s_sub_u32 s88, s47, 4
s_mul_i32 s89, s88, 37
s_lshr_b32 s89, s89, 8
s_mul_i32 s89, s89, 7
s_sub_u32 s88, s88, s89
s_lshl_b32 s88, s88, 7
s_mul_i32 s89, s44, 7168
s_add_u32 s88, s88, s89
s_movk_i32 s89, 896
v_lshrrev_b32 v4, 3, v1
v_bfe_u32 v5, v1, 1, 2
v_lshrrev_b32 v6, 1, v4
v_xor_b32 v5, v5, v6
v_and_b32 v6, 1, v1
v_lshlrev_b32 v6, 4, v6
v_lshl_add_u32 v5, v5, 5, v6
v_mad_u32_u24 v5, v4, s89, v5
v_add_u32 v204, s88, v5
s_lshl_b32 s100, s44, 10
s_lshl_b32 s88, s47, 2
s_add_u32 s88, s88, s44
s_mul_i32 s88, s88, 3136
v_lshl_add_u32 v207, v1, 7, s88
s_mov_b32 s3, {2 * FR_ST}
s_mul_i32 s88, s46, 24
s_add_u32 s88, s88, s47
s_mul_i32 s89, s45, 160
s_add_u32 s88, s88, s89
s_sub_u32 s89, s2, 96
s_cmp_ge_u32 s47, 24
s_cselect_b32 s88, s89, s88
s_cselect_b32 s95, {FR_ST}, s3
s_cselect_b32 s3, -1, 0xffff
s_lshl_b32 s94, s88, {FSH}
s_add_u32 s94, s94, {FL_WS}""")
def fill(A, c):
    out = []
    for q in (range(8) if c == 3 else range(7, 15)):
        out.append((lambda q=q: A(f"s_add_u32 m0, s100, {WA + q*4096 if c == 3 else (q-7)*4096}\ns_mov_b32 s89, {q*4*7168}"),
                    lambda: A.vmem("buffer_load_dwordx4 v204, s[96:99], s89 offen lds", "wo"), "wo"))
    if c == 2: return [(lambda: A("s_mov_b64 exec, 0x1ffffff"), lambda: (A.vmem("buffer_load_dword v206, v207, s[96:99], 0 offen", "t"), A("s_mov_b64 exec, -1")), "t")]
    if c == 3: out.insert(0, (lambda: None, lambda: A.vmem("buffer_load_dword v205, off, s[24:27], 0 sc1", "nonce"), "nonce"))
    return out
PL = "buffer_load_dwordx4 v[4:7], v8, s[40:43], 0 offen sc1\nbuffer_load_dwordx4 v[12:15], v8, s[40:43], 0 offen offset:16 sc1"
def poll(A, lab, msk, issued=False):
    A("s_mov_b32 s74, 0x40000" + (f"\ns_branch {lab}_w" if issued else ""))
    A(f"""{lab}:
s_sub_u32 s74, s74, 1
s_cbranch_scc1 {lab}_x
{PL}
{lab}_w:
s_waitcnt vmcnt(0)
v_cmp_ne_u32 s[62:63], s101, v4
v_cmp_ne_u32 s[64:65], s101, v6
v_cmp_ne_u32 s[66:67], s101, v12
v_cmp_ne_u32 s[68:69], s101, v14
s_or_b64 s[62:63], s[62:63], s[64:65]
s_or_b64 s[66:67], s[66:67], s[68:69]
s_or_b64 s[62:63], s[62:63], s[66:67]
s_and_b64 s[64:65], s[62:63], {msk}
s_cbranch_scc1 {lab}
{lab}_x:""")
import re
VM = {8: 240, 9: 241, 10: 242, 11: 243}; VM.update({16+i: 244+i for i in range(11)}); VM.update({28+i: 208+i for i in range(32)})
SM = {45+i: 4+i for i in range(15)}; SM.update({32+i: 20+i for i in range(4)})
def ren(l):
    if l.startswith("L_") or "cbranch" in l: return l
    def f(p, M):
        return lambda m: (f"{p}[{M.get(int(m[1]), int(m[1]))}:{M.get(int(m[2]), int(m[2]))}]" if m[1] else f"{p}{M.get(int(m[3]), int(m[3]))}")
    l = re.sub(r"\bv\[(\d+):(\d+)\]|\bv(\d+)\b", f("v", VM), l)
    return re.sub(r"\bs\[(\d+):(\d+)\]|\bs(\d+)\b", f("s", SM), l)
def p2_setup(A0, opt):
    pre(A0)
    if opt.get("r16"): A0("s_lshr_b32 s88, s3, 8\ns_lshr_b32 s89, s3, 16\ns_max_u32 s3, s89, 0xff")
    A = Asm()
    k2_setup(A, opt)
    A("s_min_u32 s61, s45, s49\ns_and_b32 s61, s61, 15" if opt.get("r16") else "s_mov_b32 s61, s45")
    A(f"""s_mul_i32 s61, s61, {FR_ST}
s_add_u32 s61, s61, {FL_WS}
v_lshl_add_u32 v8, v1, {FSH}, s61
v_mov_b32 v10, s94
v_mad_u32_u24 v10, v1, s95, v10
v_lshrrev_b32 v4, 3, v1
v_and_b32 v5, 7, v1
v_lshrrev_b32 v6, 1, v4
v_xor_b32 v5, v5, v6
v_lshlrev_b32 v5, 4, v5
v_lshl_add_u32 v5, v4, 10, v5
s_lshl_b32 s61, s45, 16
s_lshl_b32 s62, s44, 14
s_add_u32 s61, s61, s62
v_add_u32 v17, s61, v5
v_xor_b32 v21, 64, v17
v_add_u32 v21, 8192, v21
s_add_u32 s56, s62, {OB}
v_lshrrev_b32 v4, 1, v3
v_xor_b32 v4, v4, v2
v_lshlrev_b32 v4, 4, v4
v_lshl_add_u32 v4, v3, 7, v4
v_add_u32 v9, s56, v4
v_xor_b32 v11, 64, v9
s_lshl_b32 s61, s48, 2
s_add_u32 s61, s61, s44
s_mul_i32 s61, s61, 19
v_add_u32 v4, s61, v1
v_min_u32 v4, 511, v4
s_lshl_b32 s61, s45, 16
v_lshl_add_u32 v255, v4, 7, s61""")
    k2_coefs(A)
    for l in A.L: A0(ren(l))
def tlb(A0, opt):
    if opt.get("tl"):
        A0("s_mov_b64 exec, 1"); A0.vmem("buffer_load_dword v206, v247, s[20:23], 0 offen", "t"); A0("s_mov_b64 exec, -1")
        A0(f"s_mov_b32 s61, {Y_WS + 3840}"); A0.vmem("buffer_load_dword v206, off, s[40:43], s61", "t")
        A0(f"s_mov_b32 s61, {G_WS + 32768}"); A0.vmem("buffer_load_dword v206, off, s[40:43], s61", "t")
def fused_body(opt):
    opt = dict(opt); opt.update(_pre=lambda A: p2_setup(A, opt), _post=lambda A: tlb(A, opt), _fill=fill, _fused=1); opt.setdefault("st", "sc1")
    ld = opt.get("ld", "sc1")
    A = Asm()
    A("s_cmp_ge_u32 s2, 256\ns_cbranch_scc1 L_end")
    stamp(A, opt, 0)
    load_ptrs(A)
    if opt.get("cp"):
        A("""s_cmp_ge_u32 s2, 8
s_cbranch_scc1 L_nocp
s_getpc_b64 s[90:91]
L_pc:
v_lshlrev_b32 v2, 7, v0
v_mov_b32 v3, s91
v_add_co_u32 v2, vcc, s90, v2
v_addc_co_u32 v3, vcc, 0, v3, vcc
v_cmp_gt_u32 vcc, (L_end - L_pc) / 128, v0
s_and_saveexec_b64 s[90:91], vcc
s_cbranch_execz L_cp2
global_load_dword v206, v[2:3], off
L_cp2:
s_mov_b64 exec, -1
L_nocp:""")
    A("s_memrealtime s[92:93]")
    A("v_lshrrev_b32 v2, 6, v0\nv_and_b32 v1, 63, v0\ns_and_b32 s45, s2, 1\nv_readfirstlane_b32 s44, v2\ns_bfe_u32 s46, s2, 0x20001\ns_lshr_b32 s47, s2, 3\ns_waitcnt lgkmcnt(0)")
    srd(A, 40, 26, WS_BYTES)
    A("s_movk_i32 s26, 256\ns_mov_b32 s27, 0x20000")
    A("s_or_b32 s88, s2, s44\ns_cbranch_scc1 L_nopub\ns_or_b32 s92, s92, 1\nv_mov_b32 v3, s92\ns_mov_b64 exec, 1\nbuffer_store_dword v3, off, s[24:27], 0 sc1\ns_mov_b64 exec, -1\nL_nopub:")
    A("s_cmp_ge_u32 s47, 24\ns_cbranch_scc1 L_dft")
    qkv_role(A, opt)
    A("s_branch L_k1_fin\nL_dft:")
    A.vm = []; A.lg = []
    dft_role(A, opt)
    A("L_k1_fin:")
    A.vm = []; A.lg = []
    stamp(A, opt, 3)
    i1 = len(A.L)
    for i in range(4): A(f"v_add_u32 v{84+i}, {WA}, v{22+i}")
    A("""s_waitcnt vmcnt(0)
v_readfirstlane_b32 s101, v205
s_cmp_lg_u32 s101, 0
s_cbranch_scc1 L_have
s_mov_b32 s74, 0x40000
L_renonce:
s_sub_u32 s74, s74, 1
s_cbranch_scc1 L_have
buffer_load_dword v205, off, s[24:27], 0 sc1
s_waitcnt vmcnt(0)
v_readfirstlane_b32 s101, v205
s_cmp_eq_u32 s101, 0
s_cbranch_scc1 L_renonce
L_have:
s_barrier
s_cmp_lg_u32 s44, 1
s_cbranch_scc1 L_noflag
v_mov_b32 v4, s101
s_mov_b32 exec_hi, 0
s_mov_b32 exec_lo, s3
buffer_store_dword v4, v10, s[40:43], 0 offen sc1
s_mov_b64 exec, -1
L_noflag:""")
    stamp(A, opt, 4)
    A("s_cmp_lt_u32 s2, 32\ns_cbranch_scc1 L_fin")
    rds = []
    for h in range(16):
        for ct in range(4):
            for j in range(2):
                x = ct ^ (2*(h&1))
                rds.append(f"ds_read_b64_tr_b16 {ar(16*h+4*ct+2*j,2)}, v{84+x if h < 8 else 22+x} offset:{(28*h+16*j - (0 if h < 8 else 224))*128}")
    pp = int(opt.get("pp", 96))
    PLd = "\n".join(f"s_mov_b64 exec, s[{62+2*k}:{63+2*k}]\nbuffer_load_dword v{124+k}, v8, s[40:43], s{70+k} offen sc1" for k in range(3))
    A(f"s_mov_b64 s[62:63], -1\ns_mov_b64 s[64:65], -1\ns_mov_b32 s66, -1\ns_mov_b32 s67, 0\ns_mov_b32 s70, 0\ns_mov_b32 s71, {64*FS}\ns_mov_b32 s72, {128*FS}")
    for i in range(129):
        if i == pp: A(f"s_cmp_lg_u32 s44, 0\ns_cbranch_scc1 L_p0\n{PLd}\ns_mov_b64 exec, -1\nL_p0:")
        if i < 128: A(rds[i])
    A("s_cmp_lg_u32 s44, 0\ns_cbranch_scc1 L_go\ns_mov_b32 s74, 0x40000\nL_pa:\ns_waitcnt vmcnt(0)")
    for k in range(3): A(f"s_mov_b64 exec, s[{62+2*k}:{63+2*k}]\nv_cmp_ne_u32 s[{62+2*k}:{63+2*k}], s101, v{124+k}")
    A("s_or_b64 s[68:69], s[62:63], s[64:65]\ns_or_b64 s[68:69], s[68:69], s[66:67]\ns_cbranch_scc0 L_pa_x")
    if opt.get("sl"): A(f"s_sleep {opt['sl']}")
    A(PLd)
    A("s_sub_u32 s74, s74, 1\ns_cbranch_scc0 L_pa\nL_pa_x:")
    A("s_mov_b64 exec, -1\nL_go:\ns_waitcnt lgkmcnt(0)\ns_barrier")
    stamp(A, opt, 5)
    if opt.get("t2"):
        A("s_mov_b64 exec, 0x7ffff"); A.vmem(f"buffer_load_dword v206, v255, s[40:43], 0 offen {ld}", "t"); A("s_mov_b64 exec, -1")
    for f in k2_y(A, ld): f()
    A.vmem(f"buffer_load_dword v27, v18, s[40:43], 0 offen {ld}", "g")
    for hp in range(8):
        for hf in range(2):
            A(f"s_add_u32 m0, s56, {hp*2048 + hf*1024 - hp*128}\ns_nop 0")
            A.vmem(f"buffer_load_dwordx4 v{17+4*hf}, s[40:43], 0 offen offset:{hp*128} {ld} lds", ("o", hp))
        if hp == int(opt.get("yb", 7)): A.wait_vm("y"); A("s_barrier")
    for f in k2_rd_y(A, 0): f()
    for ks in range(4):
        interleave(A, k2_mf_y(A, ks), k2_rd_y(A, ks+1) if ks < 3 else [], every=2)
    def rd(hp):
        def f(hd):
            if hd == 0: A.wait_vm(("o", hp))
            A.ds(f"ds_read_b128 {vr(OF+8*hp+4*hd,4)}, v{9+2*hd} offset:{hp*2048}", ("of", 2*hp+hd))
        return [lambda: f(0), lambda: f(1)]
    def mf(h):
        def g(ct):
            if ct == 0: A.wait_lg(("of", h))
            d = vr(AB+4*ct, 4)
            A(f"v_mfma_f32_16x16x32_bf16 {d}, {ar(16*h+4*ct,4)}, {vr(OF+4*h,4)}, {'0' if h == 0 else d}")
        return [lambda ct=ct: g(ct) for ct in range(4)]
    for f in rd(0): f()
    for hp in range(8):
        interleave(A, mf(2*hp) + mf(2*hp+1), rd(hp+1) if hp < 7 else [], every=2, start=1)
        if hp == 0: stamp(A, opt, 6)
    k2_final(A)
    A.L[i1:] = [ren(l) for l in A.L[i1:]]
    A("L_fin:")
    return A
```

```python
from asmlib import *
O_WS, Y_WS, G_WS, T_WS = 0, 2 << 20, 4 << 20, 5 << 20
WS_BYTES = 6 << 20
XB, WB, HB = 2048 * 896, 448 * 2688, 448 * 896

def load_ptrs(A):
    A("s_load_dwordx16 s[4:19], s[0:1], 0\ns_load_dwordx8 s[20:27], s[0:1], 64")

def stamp(A, opt, slot):
    if not opt.get("stamp"): return
    A(f"s_memrealtime s[{80+2*slot}:{81+2*slot}]")

def stamp_store(A, opt, base, nst):
    if not opt.get("stamp"): return
    A("s_waitcnt lgkmcnt(0)")
    A(f"s_lshl_b32 s3, s2, 2\ns_add_u32 s3, s3, s44\ns_lshl_b32 s3, s3, 5\ns_add_u32 s3, s3, {T_WS + base}")
    for i in range(nst):
        A(f"v_mov_b32 v1, s{80+2*i}\nv_mov_b32 v2, s3\nbuffer_store_dword v1, v2, s[40:43], 0 offen offset:{4*i}")

def interleave(A, main, fill, every=1, start=0):
    fill = list(fill); n = len(main)
    for i, m in enumerate(main):
        m()
        if i >= start:
            left = n - i
            k = -(-len(fill) // left) if every == 0 else every
            for _ in range(min(k, len(fill))): fill.pop(0)()
    for f in fill: f()

def main_loop(A, opt, dma, reads, mf, late=False):
    P, G = int(opt.get("P", 3)), int(opt.get("G", 4))
    fifo = [(c - 4, x) for c in range(P, 7) for x in dma(c)]
    extra = [(c, x) for c in (3, 4) for x in opt["_fill"](A, c)] if opt.get("_fill") else []
    nl = int(opt.get("wl", 16)) if late or opt.get("dl") else 0
    if opt.get("to"):
        pos = int(opt["to"]) * len(dma(0)); fifo.insert(pos, (-1, opt["_fill"](A, 2)[0]))
    fifo += extra[:len(extra) - nl]
    if opt.get("_pre"): opt["_pre"](A)
    spread(A, A.i_pro, [x for c in range(int(opt.get("P0", 1)), P) for x in dma(c)], int(opt.get("ps", 20)))
    if opt.get("_post"): opt["_post"](A)
    A.wait_vm(("d", 0)); A("s_barrier")
    stamp(A, opt, 1)
    for f in reads(0): f()
    free = -1; last = -G; i = 0
    for n in range(14):
        m = mf(n); c = n // 2
        rd = reads(n+1) if n < 13 and not n & 1 else []
        for j, g in enumerate(m):
            if n & 1 and n < 13 and j == 6:
                assert all(t != ("d", c+1) for _, (_, _, t) in fifo), (n, "chunk not issued")
                A.wait_lg0(); A.wait_vm(("d", c+1)); A("s_barrier"); free = c
                rd = reads(n+1)
            go = fifo and fifo[0][0] <= free and i - last >= G
            tt = go and fifo[0][1][2] == "t"
            if go and not tt: fifo[0][1][0]()
            g()
            if tt: fifo[0][1][0]()
            if go: fifo.pop(0)[1][1](); last = i
            k = 0 if go else (2 if len(rd) > len(m) - j - 3 else 1)
            for _ in range(min(k, len(rd))): rd.pop(0)()
            i += 1
        for f in rd: f()
    for _, x in fifo: x[0](); A("s_nop 0"); x[1]()
    stamp(A, opt, 2)
    return [x for _, x in extra[len(extra) - nl:]]

def spread(A, i0, items, step):
    old = A.L[i0:]; del A.L[i0:]; masked = False; k = 0
    live = [False] * (len(old) + 1)
    for j in range(len(old) - 1, -1, -1):
        l = old[j]
        live[j] = True if l.startswith(("s_cselect", "s_cbranch_scc")) else (False if l.startswith(("s_cmp", "s_bitcmp")) else live[j+1])
    for j, l in enumerate(old):
        if masked is False and items and j >= k and not live[j] and not l.startswith("s_mov_b32 exec") and "s60" not in l:
            p, ld, _ = items.pop(0); p(); A(l); ld(); k = j + step
        else: A(l)
        if l.startswith("s_mov_b32 exec_lo"): masked = True
        if l.startswith("s_mov_b64 exec, -1"): masked = False
    assert not items

def warm(A, opt, dft):
    t = opt.get("tch", "")
    A("s_lshl_b32 s59, s47, 2\ns_add_u32 s59, s59, s44")
    if "W" in t:
        srd(A, 64, 16, WB)
        A("""v_and_b32 v2, 15, v1
v_lshrrev_b32 v3, 4, v1
v_lshl_add_u32 v3, v3, 7, s59
v_mul_u32_u24 v4, 11, v2
v_lshrrev_b32 v4, 5, v4
s_movk_i32 s60, 2688
s_mul_i32 s61, s46, 224
v_mul_u32_u24 v3, s60, v3
v_mul_u32_u24 v2, 108, v2
v_mul_u32_u24 v4, 572, v4
s_mov_b32 exec_lo, 0x1ff01ff
v_add3_u32 v3, v3, v2, v4
s_mov_b32 exec_hi, 0x1ff01ff""")
        A.vmem("buffer_load_dword v206, v3, s[64:67], s61 offen", "t")
        A("s_mov_b64 exec, -1")
    if "X" in t:
        A("""s_lshl_b32 s60, s59, 4
s_add_u32 s60, s60, s45
s_mul_i32 s60, s60, 896
v_lshrrev_b32 v2, 3, v1
v_and_b32 v3, 7, v1
v_mul_u32_u24 v2, 1792, v2
s_mov_b32 exec_lo, XM
v_lshl_add_u32 v2, v3, 7, v2
s_mov_b32 exec_hi, XM""".replace("XM", hex(0x01010101 * int(opt.get("xm", "0x7f"), 16))))
        A.vmem("buffer_load_dword v206, v2, s[28:31], s60 offen", "t")
        A("s_mov_b64 exec, -1")
    if "H" in t and dft:
        A("""s_sub_u32 s59, s59, 96
s_lshl_b32 s60, s46, 6
s_lshl_b32 s59, s59, 1
s_add_u32 s60, s60, s59
s_mul_i32 s60, s60, 896
v_lshlrev_b32 v2, 7, v1
s_mov_b64 exec, 0x3fff""")
        srd(A, 64, 10, HB)
        A.vmem("buffer_load_dword v206, v2, s[64:67], s60 offen", "t")
        A.vmem("buffer_load_dword v206, v2, s[36:39], s60 offen", "t")
        A("s_mov_b64 exec, -1")

def prologue(A, opt, dma, dft=False):
    for c in range(int(opt.get("P0", 1)) + 1):
        if c == int(opt.get("tp", 0)): warm(A, opt, dft)
        if c == int(opt.get("P0", 1)): break
        for pre, ld, _ in dma(c):
            n0 = len(A.L); pre()
            if len(A.L) - n0 < 2: A("s_nop 0")
            ld()
    A.i_pro = len(A.L)

def band_masks():
    ma, mb, mb0 = [], [], []
    for r in range(4):
        a = b = b0 = 0
        for lane in range(64):
            l, kg = lane & 15, lane >> 4
            kp = 4 * kg + r
            if kp >= l + 9: a |= 1 << lane
            if 0 <= l - kp <= 7:
                b |= 1 << lane
                if kp >= 7: b0 |= 1 << lane
        ma.append(a); mb.append(b); mb0.append(b0)
    return ma, mb, mb0

def qkv_role(A, opt):
    st = opt.get("st", "")
    SL = 36864
    srd(A, 28, 4, XB); srd(A, 32, 16, WB)
    A("""
s_and_b32 s48, s47, 1
s_lshl_b32 s49, s46, 1
s_add_u32 s48, s48, s49
s_lshr_b32 s49, s47, 1
s_lshr_b32 s50, s44, 1
s_and_b32 s51, s44, 1
v_lshrrev_b32 v2, 3, v1
v_and_b32 v3, 7, v1
v_lshrrev_b32 v4, 1, v2
v_lshlrev_b32 v5, 1, v4
v_xor_b32 v5, v3, v5
v_lshrrev_b32 v6, 2, v2
v_and_b32 v7, 3, v2
v_lshl_add_u32 v6, v6, 3, v7
s_lshl_b32 s52, s50, 5
s_lshl_b32 s53, s51, 2
s_add_u32 s52, s52, s53
v_add_u32 v6, s52, v6
s_movk_i32 s53, 2688
s_mul_i32 s54, s48, 112
v_mul_u32_u24 v6, s53, v6
v_lshl_add_u32 v6, v5, 4, v6
v_add_u32 v6, s54, v6
v_cmp_eq_u32 vcc, 7, v5
v_bfrev_b32 v7, 1
s_mul_i32 s55, s50, 12288
v_cndmask_b32 v32, v6, v7, vcc
s_lshl_b32 s56, s51, 11
s_add_u32 s55, s55, s56
s_mul_i32 s56, s44, 3072
s_add_u32 s56, s56, 24576
s_mul_i32 s57, s49, 86
s_mul_i32 s58, s44, 24
s_add_u32 s57, s57, s58
s_sub_u32 s57, s57, 7
s_lshl_b32 s57, s57, 1
s_add_u32 s57, s57, s45
s_mul_i32 s57, s57, 896
s_movk_i32 s58, 1792
v_mul_u32_u24 v8, s58, v2
v_add_u32 v8, s57, v8
v_xor_b32 v9, v3, v4
s_lshl_b32 s59, s51, 2
v_xor_b32 v9, s59, v9
v_xor_b32 v10, 4, v9
v_lshl_add_u32 v33, v9, 4, v8
v_lshl_add_u32 v34, v10, 4, v8
v_add_u32 v34, 14336, v34
v_add_u32 v35, 28672, v33""")
    def dma(c):
        slot = c % 4; out = []
        for kp in range(2):
            for sec in range(3):
                def pre(kp=kp, sec=sec):
                    A(f"s_add_u32 m0, s55, {slot*SL + sec*4096 + kp*1024 - sec*896}")
                    if sec == 0: A(f"s_mov_b32 s60, {c*172032 + kp*43008}")
                out.append((pre, lambda sec=sec: A.vmem(f"buffer_load_dwordx4 v32, s[32:35], s60 offen offset:{sec*896} {opt.get('pw','')} lds", ("d", c)), ("d", c)))
        for i in range(3):
            out.append((lambda i=i: A(f"s_add_u32 m0, s56, {slot*SL + i*1024 - c*128}"),
                        lambda i=i: A.vmem(f"buffer_load_dwordx4 v{33+i}, s[28:31], 0 offen offset:{c*128} {opt.get('px','')} lds", ("d", c)), ("d", c)))
        return out
    prologue(A, opt, dma)
    A(f"""
v_lshrrev_b32 v2, 4, v1
v_bfe_u32 v3, v1, 2, 2
v_and_b32 v4, 3, v1
v_and_b32 v5, 1, v2
v_lshl_add_u32 v5, v5, 2, v3
v_lshrrev_b32 v6, 1, v2
v_lshlrev_b32 v6, 10, v6
v_lshl_add_u32 v6, v5, 7, v6
v_and_b32 v7, 6, v5
s_mul_i32 s61, s51, 56
v_lshl_add_u32 v8, v4, 3, s61
v_add_u32 v9, 32, v8
v_lshrrev_b32 v10, 4, v8
v_xor_b32 v10, v10, v7
v_and_b32 v8, 8, v8
v_lshl_add_u32 v10, v10, 4, v8
v_add_u32 v16, v6, v10
v_lshrrev_b32 v10, 4, v9
v_xor_b32 v10, v10, v7
v_lshl_add_u32 v10, v10, 4, v8
v_add_u32 v17, v6, v10
v_and_b32 v3, 15, v1
v_lshrrev_b32 v4, 1, v3
v_xor_b32 v4, v4, v2
s_mul_i32 s61, s50, 6144
s_add_u32 s61, s61, 24576
v_lshlrev_b32 v5, 7, v3
v_add_u32 v5, s61, v5
v_lshl_add_u32 v18, v4, 4, v5
v_xor_b32 v19, 64, v18""")
    for s in range(1, 4):
        for i in range(4): A(f"v_add_u32 v{16+4*s+i}, {s*SL}, v{16+i}")
    A(f"""
s_mul_i32 s61, s44, 3072
s_add_u32 s61, s61, 36864
v_lshrrev_b32 v4, 2, v3
v_xor_b32 v4, v4, v2
v_lshlrev_b32 v4, 4, v4
v_lshl_add_u32 v4, v3, 6, v4
v_add_u32 v14, s61, v4
v_xor_b32 v4, v1, v2
v_lshl_add_u32 v15, v4, 4, s61
v_lshrrev_b32 v3, 2, v1
s_mul_i32 s61, s50, 48
v_add_u32 v4, s61, v3
s_mul_i32 s62, s49, 86
s_sub_u32 s62, s62, 7
v_add_u32 v5, s62, v4
v_and_b32 v6, 15, v5
v_lshl_add_u32 v6, v6, 1, s45
v_ashrrev_i32 v7, 4, v5
v_lshl_add_u32 v6, v6, 6, v7
s_lshl_b32 s63, s48, 1
s_add_u32 s63, s63, s51
v_lshl_add_u32 v6, v6, 4, s63
v_and_b32 v7, 3, v1
v_lshl_add_u32 v6, v6, 2, v7
v_lshlrev_b32 v6, 4, v6
v_bfrev_b32 v7, 1
s_sub_u32 s63, 1031, s62
s_sub_u32 s63, s63, 14
s_min_u32 s63, s63, 86""")
    for T in range(3):
        A(f"v_add_u32 v8, {16*T-7}, v4\nv_cmp_gt_u32 vcc, s63, v8\nv_add_u32 v9, {1024*T}, v6\ns_nop 0\nv_cndmask_b32 v{11+T}, v7, v9, vcc")
    ma, mb, mb0 = band_masks()
    A("s_or_b32 s61, s49, s50\ns_cmp_eq_u32 s61, 0")
    for r in range(4):
        for hi in range(2):
            x, y = (mb0[r] >> (32*hi)) & 0xffffffff, (mb[r] >> (32*hi)) & 0xffffffff
            A(f"s_mov_b32 s{72+2*r+hi}, {y:#x}")
            if x != y: A(f"s_cselect_b32 s{72+2*r+hi}, {x:#x}, s{72+2*r+hi}")
    FS = [36, 72]
    def reads(n):
        c, ksl = divmod(n, 2); b = 16 + 4 * (c % 4); f = FS[n & 1]; out = []
        for t in range(3):
            out.append(lambda t=t: A.ds(f"ds_read_b128 {vr(f+4*t,4)}, v{b+2+ksl} offset:{t*2048}", ("x", n)))
        for sec in range(3):
            for ft in range(2):
                for j in range(2):
                    out.append(lambda sec=sec, ft=ft, j=j: A.ds(
                        f"ds_read_b64_tr_b16 {vr(f+12+(sec*2+ft)*4+2*j,2)}, v{b+ft} offset:{((ksl*3+sec)*2+j)*2048}", ("w", n, sec, ft)))
        return out
    def mf(n):
        f = FS[n & 1]; out = []
        for sec in range(3):
            for ft in range(2):
                for t in range(3):
                    def g(sec=sec, ft=ft, t=t):
                        if t == 0 and ft == 0: A.wait_lg(("x", n), ("w", n, sec, 0), ("w", n, sec, 1))
                        d = 108 + sec*24 + (t*2+ft)*4; wv = f+12+(sec*2+ft)*4; xv = f+4*t
                        A(mfma(d, wv, xv, "0" if n == 0 else None) if sec < 2 else mfma(d, xv, wv, "0" if n == 0 else None))
                    out.append(g)
        return out
    if opt.get("ds"):
        post0 = opt["_post"]; opt = dict(opt)
        def post(A):
            post0(A); A("s_mov_b32 exec_lo, 0x11111111\ns_mov_b32 exec_hi, 0x11111111")
            A.vmem(f"buffer_store_dword v1, v12, s[40:43], 0 offen {st}", "t"); A("s_mov_b64 exec, -1")
        opt["_post"] = post
    late = main_loop(A, opt, dma, reads, mf, True); i0 = len(A.L)
    Q = lambda t: 36 + 4*t
    K = lambda T: 48 + 4*(T+1)
    V = lambda ft, T: 64 + 8*ft + 2*(T+1)
    S = lambda T: 84 + 8*T
    acc = lambda sec, t, ft: 108 + sec*24 + (t*2+ft)*4
    def pk(d, s): A(f"v_cvt_pk_bf16_f32 v{d}, v{s}, v{s+1}\nv_cvt_pk_bf16_f32 v{d+1}, v{s+2}, v{s+3}")
    for r in range(4):
        for hi in range(2):
            A(f"s_mov_b32 s{56+2*r+hi}, {(ma[r] >> (32*hi)) & 0xffffffff:#x}\ns_mov_b32 s{64+2*r+hi}, {(mb[r] >> (32*hi)) & 0xffffffff:#x}")
    for ft in range(2): pk(K(2)+2*ft, acc(1, 2, ft))
    A("v_lshlrev_b32 v2, 4, v1\ns_lshl_b32 s52, s44, 11\ns_add_u32 s52, s52, 147456\nv_add_u32 v3, s52, v2\ns_lshl_b32 s52, s51, 11\ns_add_u32 s52, s52, 147456\nv_add_u32 v4, s52, v2")
    for ft in range(2): pk(V(ft, 2), acc(2, 2, ft))
    A.ds(f"ds_write_b128 v3, {vr(K(2),4)}", "hw")
    A.ds(f"ds_write_b64 v3, {vr(V(0,2),2)} offset:1024", "hw")
    A.ds(f"ds_write_b64 v3, {vr(V(1,2),2)} offset:1032", "hw")
    for t in range(3):
        for ft in range(2): pk(Q(t)+2*ft, acc(0, t, ft))
    for t in range(2):
        for ft in range(2): pk(K(t)+2*ft, acc(1, t, ft)); pk(V(ft, t), acc(2, t, ft))
    A("s_mov_b32 exec_lo, 0\ns_mov_b32 exec_hi, 0xffff0000")
    for t in range(3): A(f"v_mov_b32 v{Q(t)+2}, 0\nv_mov_b32 v{Q(t)+3}, 0")
    A("s_mov_b64 exec, -1")
    for i in range(4): A(f"v_mov_b32 v{80+i}, 0x3f803f80")
    A("v_mov_b32 v10, 0xf149f2ca")
    A.wait_lg0(); A("s_barrier")
    A.ds(f"ds_read_b128 {vr(K(-1),4)}, v4", "hk")
    A.ds(f"ds_read_b64 {vr(V(0,-1),2)}, v4 offset:1024", "hv")
    A.ds(f"ds_read_b64 {vr(V(1,-1),2)}, v4 offset:1032", "hv")
    for T in (2, 1):
        A(mfma(S(T), K(T-1), Q(T), "0")); A(mfma(S(T)+4, K(T), Q(T), "0"))
    A(mfma(S(0)+4, K(0), Q(0), "0"))
    A.wait_lg("hk"); A(mfma(S(0), K(-1), Q(0), "0"))
    A("s_mov_b32 s52, 0x3e8b97f6\ns_nop 2")
    U = (2, 1, 0)
    for T in U:
        if T == 0: A("s_nop 0")
        for i in range(8):
            mk = 56 + 2*i if i < 4 else ((72 if T == 0 else 64) + 2*(i-4))
            A(f"v_cndmask_b32 v{S(T)+i}, v10, v{S(T)+i}, s[{mk}:{mk+1}]")
    M = lambda T: 156 + T
    TT = lambda T: 160 + T
    for T in U: A(f"v_max3_f32 v{M(T)}, v{S(T)}, v{S(T)+1}, v{S(T)+2}")
    for T in U: A(f"v_max3_f32 v{M(T)}, v{M(T)}, v{S(T)+3}, v{S(T)+4}")
    for T in U: A(f"v_max3_f32 v{M(T)}, v{M(T)}, v{S(T)+5}, v{S(T)+6}")
    for T in U: A(f"v_max_f32 v{M(T)}, v{M(T)}, v{S(T)+7}")
    for sw in (16, 32):
        for T in U: A(f"v_mov_b32 v{TT(T)}, v{M(T)}")
        for T in U: A(f"v_permlane{sw}_swap_b32 v{M(T)}, v{TT(T)}")
        for T in U: A(f"v_max_f32 v{M(T)}, v{M(T)}, v{TT(T)}")
    for T in U: A(f"v_mul_f32 v{M(T)}, s52, v{M(T)}")
    P = lambda T: 108 + 4*T
    O = lambda T: 120 + 12*T
    A.wait_lg0()
    for T in U:
        for i in range(8): A(f"v_fma_f32 v{S(T)+i}, v{S(T)+i}, s52, -v{M(T)}")
        for i in range(8): A(f"v_exp_f32 v{S(T)+i}, v{S(T)+i}")
        for i in range(4): A(f"v_cvt_pk_bf16_f32 v{P(T)+i}, v{S(T)+2*i}, v{S(T)+2*i+1}")
        A("s_nop 1")
        A(mfma(O(T)+8, 80, P(T), "0")); A(mfma(O(T), V(0, T-1), P(T), "0")); A(mfma(O(T)+4, V(1, T-1), P(T), "0"))
    spread(A, i0, late, int(opt.get("ws", 14)))
    A("s_mov_b32 s52, -1\ns_mov_b32 s53, 0xffff")
    for T in U:
        if T == 0: A("s_nop 1")
        A(f"v_rcp_f32 v{O(T)+8}, v{O(T)+8}\ns_nop 0")
        for i in range(8): A(f"v_mul_f32 v{O(T)+i}, v{O(T)+i}, v{O(T)+8}")
        d = 164 + 4*T
        for i in range(4): A(f"v_cvt_pk_bf16_f32 v{d+i}, v{O(T)+2*i}, v{O(T)+2*i+1}")
        A(f"v_cndmask_b32 v{d+2}, 0, v{d+2}, s[52:53]\nv_cndmask_b32 v{d+3}, 0, v{d+3}, s[52:53]")
        A.ds(f"ds_write_b128 v14, {vr(d,4)} offset:{1024*T}", ("tw", T))
        A.ds(f"ds_read_b128 {vr(180+4*T,4)}, v15 offset:{1024*T}", ("tr", T))
        for X in ([T+1] if T < 2 else []) + ([0] if T == 0 else []):
            A.wait_lg(("tr", X))
            A.vmem(f"buffer_store_dwordx4 {vr(180+4*X,4)}, v{11+X}, s[40:43], 0 offen {st}", "st")

def dft_role(A, opt):
    st = opt.get("st", "")
    SL = 32768
    srd(A, 28, 4, XB); srd(A, 32, 10, HB); srd(A, 36, 12, HB)
    A(f"""
s_sub_u32 s48, s47, 24
s_lshl_b32 s49, s48, 3
s_add_u32 s49, s49, s45
s_lshl_b32 s50, s46, 2
s_add_u32 s50, s50, s44
s_lshl_b32 s51, s50, 4
s_cmp_eq_u32 s50, 15
s_cselect_b32 s32, s20, s32
s_cselect_b32 s33, s21, s33
s_cselect_b32 s34, 896, s34
s_cselect_b32 s52, 0, s51
v_lshrrev_b32 v2, 3, v1
v_and_b32 v3, 7, v1
v_lshrrev_b32 v4, 1, v2
v_xor_b32 v4, v3, v4
v_lshlrev_b32 v4, 4, v4
s_lshl_b32 s53, s44, 1
s_add_u32 s53, s53, s49
s_mul_i32 s53, s53, 896
s_mov_b32 s54, 57344
v_mad_u32_u24 v5, v2, s54, v4
v_add_u32 v32, s53, v5
v_xor_b32 v33, 64, v32
v_add_u32 v33, {8*57344}, v33
s_movk_i32 s54, 896
v_mad_u32_u24 v5, v2, s54, v4
s_mul_i32 s55, s52, 896
v_add_u32 v34, s55, v5
v_xor_b32 v35, 64, v34
v_add_u32 v35, 7168, v35
s_lshl_b32 s56, s44, 12
s_add_u32 s56, s56, 1024
s_lshl_b32 s57, s44, 11
s_add_u32 s57, s57, 17408
s_mov_b32 s58, 917504""")
    def dma(c):
        slot = c % 4; out = []
        for cs in range(2):
            for hf in range(2):
                out.append((lambda cs=cs, hf=hf: A(f"s_add_u32 m0, s57, {slot*SL + cs*8192 + hf*1024 - c*128}"),
                            lambda cs=cs, hf=hf: A.vmem(f"buffer_load_dwordx4 v{34+hf}, s[{32+4*cs}:{35+4*cs}], 0 offen offset:{c*128} lds", ("d", c)), ("d", c)))
        for ts in range(2):
            for hf in range(2):
                out.append((lambda ts=ts, hf=hf: A(f"s_add_u32 m0, s56, {slot*SL + ts*2048 + hf*1024 - c*128}"),
                            lambda ts=ts, hf=hf: A.vmem(f"buffer_load_dwordx4 v{32+hf}, s[28:31], {'s58' if ts else '0'} offen offset:{c*128} lds", ("d", c)), ("d", c)))
        return out
    prologue(A, opt, dma, True)
    tch = opt.get("tch", "")
    if "w" in tch:
        r0 = 64 * int(opt.get("P", 3)); nr = (448 - r0) // 32
        srd(A, 64, 16, WB)
        A(f"""s_lshl_b32 s59, s48, 2
s_add_u32 s59, s59, s44
s_add_u32 s59, s59, {r0}
v_and_b32 v2, 15, v1
v_lshrrev_b32 v3, 4, v1
v_lshl_add_u32 v4, v2, 5, s59
s_movk_i32 s59, 2688
s_mul_i32 s60, s46, 224
v_mul_u32_u24 v4, s59, v4
s_movk_i32 s59, 896
v_mad_u32_u24 v4, v3, s59, v4
v_add_u32 v4, s60, v4
v_cmp_gt_u32 vcc, {nr}, v2
v_cmp_gt_u32 s[60:61], 3, v3
v_bfrev_b32 v5, 1
s_and_b64 vcc, vcc, s[60:61]
v_cndmask_b32 v4, v5, v4, vcc""")
        for o in (0, 112, 220): A.vmem(f"buffer_load_dword v206, v4, s[64:67], 0 offen offset:{o}", "t")
    if "x" in tch:
        A(f"v_and_b32 v2, 31, v1\nv_lshrrev_b32 v3, 5, v1\ns_mov_b32 s59, 57344\nv_lshlrev_b32 v3, 7, v3\nv_mad_u32_u24 v4, v2, s59, v3\nv_add_u32 v4, s53, v4")
        for c in range(int(opt.get("P", 3)), 7, 2): A.vmem(f"buffer_load_dword v206, v4, s[28:31], 0 offen offset:{min(c, 5)*128}", "t")
    A("""
v_lshrrev_b32 v2, 4, v1
v_and_b32 v3, 15, v1
v_lshrrev_b32 v4, 1, v3
v_xor_b32 v4, v4, v2
v_lshlrev_b32 v5, 7, v3
v_lshl_add_u32 v16, v4, 4, v5
v_xor_b32 v17, 64, v16
v_add_u32 v18, s57, v16
v_add_u32 v19, s57, v17
v_add_u32 v16, 1024, v16
v_add_u32 v17, 1024, v17""")
    for s in range(1, 4):
        for i in range(4): A(f"v_add_u32 v{16+4*s+i}, {s*SL}, v{16+i}")
    A("v_cvt_f32_u32 v4, v3\nv_mul_f32 v4, 0x3d000000, v4\nv_add_f32 v5, 0.5, v4\nv_lshlrev_b32 v6, 2, v2\nv_cvt_f32_u32 v6, v6")
    import struct
    fl = lambda x: hex(struct.unpack("<I", struct.pack("<f", x))[0])
    for i in range(8): A(f"v_add_f32 v{36+i}, {fl(16*(i>>2) + (i&3))}, v6")
    for kt in range(2):
        for i in range(8): A(f"v_mul_f32 v{44+i}, v{4+kt}, v{36+i}")
        for i in range(8): A(f"v_fract_f32 v{44+i}, v{44+i}")
        for i in range(8): A(f"v_cos_f32 v{52+i}, v{44+i}")
        for i in range(8): A(f"v_sin_f32 v{60+i}, v{44+i}")
        for i in range(4): A(f"v_cvt_pk_bf16_f32 v{180+4*kt+i}, v{52+2*i}, v{53+2*i}")
        for i in range(4): A(f"v_cvt_pk_bf16_f32 v{188+4*kt+i}, v{60+2*i}, v{61+2*i}")
        for i in range(4): A(f"v_xor_b32 v{196+4*kt+i}, 0x80008000, v{188+4*kt+i}")
    A(f"""
s_lshl_b32 s59, s48, 1
s_add_u32 s59, s59, s45
s_lshl_b32 s59, s59, 12
s_lshl_b32 s60, s51, 4
s_add_u32 s59, s59, s60
s_add_u32 s59, s59, {Y_WS}
v_lshlrev_b32 v11, 18, v2
v_lshl_add_u32 v11, v3, 4, v11
v_add_u32 v11, s59, v11
s_lshl_b32 s59, s49, 7
s_add_u32 s59, s59, {G_WS}
v_lshl_add_u32 v12, v2, 4, s59
v_cmp_eq_u32 vcc, 0, v3
v_bfrev_b32 v7, 1
s_nop 0
v_cndmask_b32 v12, v7, v12, vcc""")
    FS = [36, 76]
    def reads(n):
        c, ksl = divmod(n, 2); b = 16 + 4 * (c % 4); f = FS[n & 1]; out = []
        for cs in range(2):
            out.append(lambda cs=cs: A.ds(f"ds_read_b128 {vr(f+32+4*cs,4)}, v{b+2+ksl} offset:{cs*8192}", ("w", n)))
        for rt in range(8):
            out.append(lambda rt=rt: A.ds(f"ds_read_b128 {vr(f+4*rt,4)}, v{b+ksl} offset:{rt*2048}", ("x", n, rt)))
        return out
    def mf(n):
        f = FS[n & 1]; out = []
        for rt in range(8):
            for cs in range(2):
                def g(rt=rt, cs=cs):
                    if cs == 0 and rt % 2 == 0: A.wait_lg(("w", n), ("x", n, rt), ("x", n, rt+1))
                    A(mfma(116 + 32*cs + 4*rt, f+4*rt, f+32+4*cs, "0" if n == 0 else None))
                out.append(g)
        return out
    for p, ld, _ in main_loop(A, opt, dma, reads, mf): p(); ld()
    A("s_cmp_eq_u32 s50, 15\ns_cbranch_scc1 L_gate\ns_nop 5")
    for u in range(4):
        for cs in range(2):
            for ts in range(2):
                s = 116 + 32*cs + 4*(2*u+ts); d = 36 + 16*cs + 4*u + 2*ts
                A(f"v_cvt_pk_bf16_f32 v{d}, v{s}, v{s+1}\nv_cvt_pk_bf16_f32 v{d+1}, v{s+2}, v{s+3}")
    A("s_nop 1")
    YR = lambda u, kt: 116 + (u*2+kt)*4
    for kt in range(2):
        for u in range(4):
            A(mfma(YR(u, kt), 180+4*kt, 36+4*u, "0")); A(mfma(YR(u, kt)+32, 196+4*kt, 36+4*u, "0"))
        for u in range(4):
            A(mfma(YR(u, kt), 188+4*kt, 52+4*u)); A(mfma(YR(u, kt)+32, 180+4*kt, 52+4*u))
    for kt in range(2):
        if kt == 1: A("s_nop 0")
        for r in range(4):
            d = 68 + 4*(kt*4+r)
            for ri in range(2):
                for up in range(2):
                    A(f"v_cvt_pk_bf16_f32 v{d+2*ri+up}, v{YR(2*up,kt)+32*ri+r}, v{YR(2*up+1,kt)+32*ri+r}")
            A(f"s_mov_b32 s60, {(16*kt+r)*65536}")
            A.vmem(f"buffer_store_dwordx4 {vr(d,4)}, v11, s[40:43], s60 offen {st}", "st")
    A("s_branch L_k1_fin\nL_gate:\ns_nop 7")
    for rt in range(8):
        A(f"buffer_store_dwordx4 {vr(116+4*rt,4)}, v12, s[40:43], 0 offen offset:{(rt>>1)*256 + (rt&1)*64} {st}")

def k1_body(opt):
    A = Asm()
    A("s_cmp_ge_u32 s2, 256\ns_cbranch_scc1 L_k1_end")
    stamp(A, opt, 0)
    load_ptrs(A)
    A("v_lshrrev_b32 v2, 6, v0\nv_and_b32 v1, 63, v0\ns_and_b32 s45, s2, 1\nv_readfirstlane_b32 s44, v2\ns_bfe_u32 s46, s2, 0x20001\ns_lshr_b32 s47, s2, 3\ns_waitcnt lgkmcnt(0)")
    srd(A, 40, 26, WS_BYTES)
    A("s_cmp_ge_u32 s47, 24\ns_cbranch_scc1 L_dft")
    qkv_role(A, opt)
    A("s_branch L_k1_fin\nL_dft:")
    A.vm = []; A.lg = []
    dft_role(A, opt)
    A("L_k1_fin:")
    return A
```

```python
from asmlib import *
from gen_k1 import *
from gen_k2 import *
FL_WS = G_WS + 65536
import sys
FS = int(dict(a.split('=') for a in sys.argv[2:]).get('fs', 32)); FSH = FS.bit_length() - 1
FR_ST = 160 * FS
WA = 110592
OB = 77824
def pre(A):
    A(f"""
s_mov_b32 s96, s18
s_mov_b32 s97, s19
s_cmp_lt_u32 s2, 32
s_cselect_b32 s98, 0, {HB}
s_mov_b32 s99, 0x20000
s_sub_u32 s88, s47, 4
s_mul_i32 s89, s88, 37
s_lshr_b32 s89, s89, 8
s_mul_i32 s89, s89, 7
s_sub_u32 s88, s88, s89
s_lshl_b32 s88, s88, 7
s_mul_i32 s89, s44, 7168
s_add_u32 s88, s88, s89
s_movk_i32 s89, 896
v_lshrrev_b32 v4, 3, v1
v_bfe_u32 v5, v1, 1, 2
v_lshrrev_b32 v6, 1, v4
v_xor_b32 v5, v5, v6
v_and_b32 v6, 1, v1
v_lshlrev_b32 v6, 4, v6
v_lshl_add_u32 v5, v5, 5, v6
v_mad_u32_u24 v5, v4, s89, v5
v_add_u32 v204, s88, v5
s_lshl_b32 s100, s44, 10
s_lshl_b32 s88, s47, 2
s_add_u32 s88, s88, s44
s_mul_i32 s88, s88, 3136
v_lshl_add_u32 v207, v1, 7, s88
s_mov_b32 s3, {2 * FR_ST}
s_mul_i32 s88, s46, 24
s_add_u32 s88, s88, s47
s_mul_i32 s89, s45, 160
s_add_u32 s88, s88, s89
s_sub_u32 s89, s2, 96
s_cmp_ge_u32 s47, 24
s_cselect_b32 s88, s89, s88
s_cselect_b32 s95, {FR_ST}, s3
s_cselect_b32 s3, -1, 0xffff
s_lshl_b32 s94, s88, {FSH}
s_add_u32 s94, s94, {FL_WS}""")
def fill(A, c):
    out = []
    for q in (range(8) if c == 3 else range(7, 15)):
        out.append((lambda q=q: A(f"s_add_u32 m0, s100, {WA + q*4096 if c == 3 else (q-7)*4096}\ns_mov_b32 s89, {q*4*7168}"),
                    lambda: A.vmem("buffer_load_dwordx4 v204, s[96:99], s89 offen lds", "wo"), "wo"))
    if c == 2: return [(lambda: A("s_mov_b64 exec, 0x1ffffff"), lambda: (A.vmem("buffer_load_dword v206, v207, s[96:99], 0 offen", "t"), A("s_mov_b64 exec, -1")), "t")]
    if c == 3: out.insert(0, (lambda: None, lambda: A.vmem("buffer_load_dword v205, off, s[24:27], 0 sc1", "nonce"), "nonce"))
    return out
PL = "buffer_load_dwordx4 v[4:7], v8, s[40:43], 0 offen sc1\nbuffer_load_dwordx4 v[12:15], v8, s[40:43], 0 offen offset:16 sc1"
def poll(A, lab, msk, issued=False):
    A("s_mov_b32 s74, 0x40000" + (f"\ns_branch {lab}_w" if issued else ""))
    A(f"""{lab}:
s_sub_u32 s74, s74, 1
s_cbranch_scc1 {lab}_x
{PL}
{lab}_w:
s_waitcnt vmcnt(0)
v_cmp_ne_u32 s[62:63], s101, v4
v_cmp_ne_u32 s[64:65], s101, v6
v_cmp_ne_u32 s[66:67], s101, v12
v_cmp_ne_u32 s[68:69], s101, v14
s_or_b64 s[62:63], s[62:63], s[64:65]
s_or_b64 s[66:67], s[66:67], s[68:69]
s_or_b64 s[62:63], s[62:63], s[66:67]
s_and_b64 s[64:65], s[62:63], {msk}
s_cbranch_scc1 {lab}
{lab}_x:""")
import re
VM = {8: 240, 9: 241, 10: 242, 11: 243}; VM.update({16+i: 244+i for i in range(11)}); VM.update({28+i: 208+i for i in range(32)})
SM = {45+i: 4+i for i in range(15)}; SM.update({32+i: 20+i for i in range(4)})
def ren(l):
    if l.startswith("L_") or "cbranch" in l: return l
    def f(p, M):
        return lambda m: (f"{p}[{M.get(int(m[1]), int(m[1]))}:{M.get(int(m[2]), int(m[2]))}]" if m[1] else f"{p}{M.get(int(m[3]), int(m[3]))}")
    l = re.sub(r"\bv\[(\d+):(\d+)\]|\bv(\d+)\b", f("v", VM), l)
    return re.sub(r"\bs\[(\d+):(\d+)\]|\bs(\d+)\b", f("s", SM), l)
def p2_setup(A0, opt):
    pre(A0)
    if opt.get("r16"): A0("s_lshr_b32 s88, s3, 8\ns_lshr_b32 s89, s3, 16\ns_max_u32 s3, s89, 0xff")
    A = Asm()
    k2_setup(A, opt)
    A("s_min_u32 s61, s45, s49\ns_and_b32 s61, s61, 15" if opt.get("r16") else "s_mov_b32 s61, s45")
    A(f"""s_mul_i32 s61, s61, {FR_ST}
s_add_u32 s61, s61, {FL_WS}
v_lshl_add_u32 v8, v1, {FSH}, s61
v_mov_b32 v10, s94
v_mad_u32_u24 v10, v1, s95, v10
v_lshrrev_b32 v4, 3, v1
v_and_b32 v5, 7, v1
v_lshrrev_b32 v6, 1, v4
v_xor_b32 v5, v5, v6
v_lshlrev_b32 v5, 4, v5
v_lshl_add_u32 v5, v4, 10, v5
s_lshl_b32 s61, s45, 16
s_lshl_b32 s62, s44, 14
s_add_u32 s61, s61, s62
v_add_u32 v17, s61, v5
v_xor_b32 v21, 64, v17
v_add_u32 v21, 8192, v21
s_add_u32 s56, s62, {OB}
v_lshrrev_b32 v4, 1, v3
v_xor_b32 v4, v4, v2
v_lshlrev_b32 v4, 4, v4
v_lshl_add_u32 v4, v3, 7, v4
v_add_u32 v9, s56, v4
v_xor_b32 v11, 64, v9
s_lshl_b32 s61, s48, 2
s_add_u32 s61, s61, s44
s_mul_i32 s61, s61, 19
v_add_u32 v4, s61, v1
v_min_u32 v4, 511, v4
s_lshl_b32 s61, s45, 16
v_lshl_add_u32 v255, v4, 7, s61""")
    k2_coefs(A)
    for l in A.L: A0(ren(l))
def tlb(A0, opt):
    if opt.get("tl"):
        A0("s_mov_b64 exec, 1"); A0.vmem("buffer_load_dword v206, v247, s[20:23], 0 offen", "t"); A0("s_mov_b64 exec, -1")
        A0(f"s_mov_b32 s61, {Y_WS + 3840}"); A0.vmem("buffer_load_dword v206, off, s[40:43], s61", "t")
        A0(f"s_mov_b32 s61, {G_WS + 32768}"); A0.vmem("buffer_load_dword v206, off, s[40:43], s61", "t")
def fused_body(opt):
    opt = dict(opt); opt.update(_pre=lambda A: p2_setup(A, opt), _post=lambda A: tlb(A, opt), _fill=fill, _fused=1); opt.setdefault("st", "sc1")
    ld = opt.get("ld", "sc1")
    A = Asm()
    A("s_cmp_ge_u32 s2, 256\ns_cbranch_scc1 L_end")
    stamp(A, opt, 0)
    load_ptrs(A)
    if opt.get("cp"):
        A("""s_cmp_ge_u32 s2, 8
s_cbranch_scc1 L_nocp
s_getpc_b64 s[90:91]
L_pc:
v_lshlrev_b32 v2, 7, v0
v_mov_b32 v3, s91
v_add_co_u32 v2, vcc, s90, v2
v_addc_co_u32 v3, vcc, 0, v3, vcc
v_cmp_gt_u32 vcc, (L_end - L_pc) / 128, v0
s_and_saveexec_b64 s[90:91], vcc
s_cbranch_execz L_cp2
global_load_dword v206, v[2:3], off
L_cp2:
s_mov_b64 exec, -1
L_nocp:""")
    A("s_memrealtime s[92:93]")
    A("v_lshrrev_b32 v2, 6, v0\nv_and_b32 v1, 63, v0\ns_and_b32 s45, s2, 1\nv_readfirstlane_b32 s44, v2\ns_bfe_u32 s46, s2, 0x20001\ns_lshr_b32 s47, s2, 3\ns_waitcnt lgkmcnt(0)")
    srd(A, 40, 26, WS_BYTES)
    A("s_movk_i32 s26, 256\ns_mov_b32 s27, 0x20000")
    A("s_or_b32 s88, s2, s44\ns_cbranch_scc1 L_nopub\ns_or_b32 s92, s92, 1\nv_mov_b32 v3, s92\ns_mov_b64 exec, 1\nbuffer_store_dword v3, off, s[24:27], 0 sc1\ns_mov_b64 exec, -1\nL_nopub:")
    A("s_cmp_ge_u32 s47, 24\ns_cbranch_scc1 L_dft")
    qkv_role(A, opt)
    A("s_branch L_k1_fin\nL_dft:")
    A.vm = []; A.lg = []
    dft_role(A, opt)
    A("L_k1_fin:")
    A.vm = []; A.lg = []
    stamp(A, opt, 3)
    i1 = len(A.L)
    for i in range(4): A(f"v_add_u32 v{84+i}, {WA}, v{22+i}")
    A("""s_waitcnt vmcnt(0)
v_readfirstlane_b32 s101, v205
s_cmp_lg_u32 s101, 0
s_cbranch_scc1 L_have
s_mov_b32 s74, 0x40000
L_renonce:
s_sub_u32 s74, s74, 1
s_cbranch_scc1 L_have
buffer_load_dword v205, off, s[24:27], 0 sc1
s_waitcnt vmcnt(0)
v_readfirstlane_b32 s101, v205
s_cmp_eq_u32 s101, 0
s_cbranch_scc1 L_renonce
L_have:
s_barrier
s_cmp_lg_u32 s44, 1
s_cbranch_scc1 L_noflag
v_mov_b32 v4, s101
s_mov_b32 exec_hi, 0
s_mov_b32 exec_lo, s3
buffer_store_dword v4, v10, s[40:43], 0 offen sc1
s_mov_b64 exec, -1
L_noflag:""")
    stamp(A, opt, 4)
    A("s_cmp_lt_u32 s2, 32\ns_cbranch_scc1 L_fin")
    rds = []
    for h in range(16):
        for ct in range(4):
            for j in range(2):
                x = ct ^ (2*(h&1))
                rds.append(f"ds_read_b64_tr_b16 {ar(16*h+4*ct+2*j,2)}, v{84+x if h < 8 else 22+x} offset:{(28*h+16*j - (0 if h < 8 else 224))*128}")
    pp = int(opt.get("pp", 96))
    PLd = "\n".join(f"s_mov_b64 exec, s[{62+2*k}:{63+2*k}]\nbuffer_load_dword v{124+k}, v8, s[40:43], s{70+k} offen sc1" for k in range(3))
    A(f"s_mov_b64 s[62:63], -1\ns_mov_b64 s[64:65], -1\ns_mov_b32 s66, -1\ns_mov_b32 s67, 0\ns_mov_b32 s70, 0\ns_mov_b32 s71, {64*FS}\ns_mov_b32 s72, {128*FS}")
    for i in range(129):
        if i == pp: A(f"s_cmp_lg_u32 s44, 0\ns_cbranch_scc1 L_p0\n{PLd}\ns_mov_b64 exec, -1\nL_p0:")
        if i < 128: A(rds[i])
    A("s_cmp_lg_u32 s44, 0\ns_cbranch_scc1 L_go\ns_mov_b32 s74, 0x40000\nL_pa:\ns_waitcnt vmcnt(0)")
    for k in range(3): A(f"s_mov_b64 exec, s[{62+2*k}:{63+2*k}]\nv_cmp_ne_u32 s[{62+2*k}:{63+2*k}], s101, v{124+k}")
    y2 = int(opt.get("y2", 0))
    CMP = "\n".join(f"s_mov_b64 exec, s[{62+2*k}:{63+2*k}]\nv_cmp_ne_u32 s[{62+2*k}:{63+2*k}], s101, v{124+k}" for k in range(3))
    ALL = "s_or_b64 s[68:69], s[62:63], s[64:65]\ns_or_b64 s[68:69], s[68:69], s[66:67]"
    y3 = int(opt.get("y3", 0))
    A(("s_or_b32 s68, s65, s66" if y2 or y3 else ALL) + "\ns_cbranch_scc0 L_pa_x")
    if opt.get("sl"): A(f"s_sleep {opt['sl']}")
    A(PLd)
    A("s_sub_u32 s74, s74, 1\ns_cbranch_scc0 L_pa\nL_pa_x:")
    if y3:
        A(f"s_mov_b64 exec, -1\nv_mov_b32 v120, 32768\nv_mov_b32 v121, s101\nds_write_b32 v120, v121\n{PLd}\ns_mov_b64 exec, -1")
        T = Asm()
        for f in k2_y(T, ld): f()
        A("\n".join(T.L))
        A(f"s_mov_b32 s74, 0x40000\ns_waitcnt vmcnt(4)\ns_branch L_pb_c\nL_pb:\ns_waitcnt vmcnt(0)\nL_pb_c:\n{CMP}\n{ALL}\ns_cbranch_scc0 L_pb_x\n{PLd}")
        A("s_sub_u32 s74, s74, 1\ns_cbranch_scc0 L_pb\nL_pb_x:\ns_mov_b64 exec, -1\ns_branch L_go2")
        A("L_go:\nv_mov_b32 v120, 32768\ns_mov_b32 s74, 0x400000\nL_ls:\nds_read_b32 v121, v120\ns_sub_u32 s74, s74, 1\ns_cbranch_scc1 L_ls_x\ns_waitcnt lgkmcnt(0)")
        A("v_readfirstlane_b32 s75, v121\ns_cmp_lg_u32 s75, s101\ns_cbranch_scc1 L_ls\nL_ls_x:")
        for f in k2_y(A, ld): f()
        A("L_go2:\ns_waitcnt lgkmcnt(0)\ns_barrier")
    else: A("s_mov_b64 exec, -1\nL_go:\ns_waitcnt lgkmcnt(0)\ns_barrier")
    if not y2: stamp(A, opt, 5)
    if opt.get("t2"):
        A("s_mov_b64 exec, 0x7ffff"); A.vmem(f"buffer_load_dword v206, v255, s[40:43], 0 offen {ld}", "t"); A("s_mov_b64 exec, -1")
    yl = int(opt.get("yl", 0)); yi = int(opt.get("yi", 8))
    if not yl and not y3:
        for f in k2_y(A, ld): f()
    def ymf():
        for f in (k2_rd_y(A, 0) if not yl else []): f()
        for ks in range(4):
            interleave(A, k2_mf_y(A, ks), k2_rd_y(A, ks+1) if ks < 3 else [], every=2)
    if y2:
        A(f"s_cmp_lg_u32 s44, 0\ns_cbranch_scc1 L_y1\n{PLd}\ns_mov_b64 exec, -1\nL_y1:")
        A.wait_vm("y"); A("s_waitcnt vmcnt(0)\ns_barrier")
        if y2 == 1: A(f"s_cmp_lg_u32 s44, 0\ns_cbranch_scc1 L_y2\n{CMP}\n{PLd}\ns_mov_b64 exec, -1\nL_y2:")
        ymf()
        A(f"s_cmp_lg_u32 s44, 0\ns_cbranch_scc1 L_go2\ns_mov_b32 s74, 0x40000\nL_pb:\ns_waitcnt vmcnt(0)\n{CMP}\n{ALL}\ns_cbranch_scc0 L_pb_x\n{PLd}")
        A("s_sub_u32 s74, s74, 1\ns_cbranch_scc0 L_pb\nL_pb_x:\ns_mov_b64 exec, -1\nL_go2:\ns_barrier")
        stamp(A, opt, 5)
    A.vmem(f"buffer_load_dword v27, v18, s[40:43], 0 offen {ld}", "g")
    for hp in range(8):
        for hf in range(2):
            A(f"s_add_u32 m0, s56, {hp*2048 + hf*1024 - hp*128}\ns_nop 0")
            A.vmem(f"buffer_load_dwordx4 v{17+4*hf}, s[40:43], 0 offen offset:{hp*128} {ld} lds", ("o", hp))
        if not y2 and not yl and hp == int(opt.get("yb", 7)): A.wait_vm("y"); A("s_barrier"); j0 = len(A.L)
        if yl and hp == yi - 1:
            for f in k2_y(A, ld): f()
    if not y2 and not yl:
        j1 = len(A.L); ymf()
        if opt.get("yx"):
            D, Y = A.L[j0:j1], A.L[j1:]
            assert len(D) % 3 == 0
            n = len(D) // 3; out = []
            for i in range(n): out += Y[i*len(Y)//n:(i+1)*len(Y)//n] + D[3*i:3*i+3]
            A.L[j0:] = out
    def rd(hp):
        def f(hd):
            if hd == 0: A.wait_vm(("o", hp))
            A.ds(f"ds_read_b128 {vr(OF+8*hp+4*hd,4)}, v{9+2*hd} offset:{hp*2048}", ("of", 2*hp+hd))
        return [lambda: f(0), lambda: f(1)]
    def mf(h):
        def g(ct):
            if ct == 0: A.wait_lg(("of", h))
            d = vr(AB+4*ct, 4)
            A(f"v_mfma_f32_16x16x32_bf16 {d}, {ar(16*h+4*ct,4)}, {vr(OF+4*h,4)}, {'0' if h == 0 else d}")
        return [lambda ct=ct: g(ct) for ct in range(4)]
    for f in rd(0): f()
    for hp in range(8):
        nx = rd(hp+1) if hp < 7 else []
        if yl and hp == yl:
            A.wait_vm("y"); A("s_barrier"); nx = nx + k2_rd_y(A, 0)
            interleave(A, mf(2*hp) + mf(2*hp+1), nx, every=1, start=1)
            ymf()
        else: interleave(A, mf(2*hp) + mf(2*hp+1), nx, every=2, start=1)
        if hp == 0: stamp(A, opt, 6)
    k2_final(A)
    A.L[i1:] = [ren(l) for l in A.L[i1:]]
    A("L_fin:")
    return A
```
